```python
import torch

def _softmax(x, axis=-1):
    return torch.softmax(x, dim=axis)
def _gelu(x):
    return torch.nn.functional.gelu(x, approximate="tanh")
def _silu(x):
    return torch.nn.functional.silu(x)
def _sigmoid(x):
    return torch.sigmoid(x)
def _layernorm(x, axis=-1, eps=1e-5):
    m = x.mean(dim=axis, keepdim=True)
    v = x.var(dim=axis, keepdim=True, unbiased=False)
    return (x - m) / torch.sqrt(v + eps)
def _scatter_add(tgt, idx, src, axis=0):
    return tgt.clone().index_add_(axis, idx, src)
def _segment_sum(src, seg, n):
    out = torch.zeros((n,) + src.shape[1:], dtype=src.dtype)
    return out.index_add_(0, seg, src)
def _pad(x, pw):
    flat = tuple(v for pair in reversed(pw) for v in pair)
    return torch.nn.functional.pad(x, flat)

kernel_name = 'gated_mix__ssm_conv_s4d__grouped_kv_mqa__prompt'

def setup_inputs():

    _w = (lambda a: (lambda t: t.to(torch.bfloat16) if t.is_floating_point() else t)(torch.as_tensor(a)))
    def _A_setup():
        Bsz, L, D, N = 1, 2048, 640, 128
        return {
            "u": _w((lambda *s: torch.randn(*s, dtype=torch.bfloat16) * 0.05)(Bsz, L, D)),
            "log_A_real": _w((lambda *s: torch.randn(*s, dtype=torch.bfloat16) * 6.4)(D, N) * 0.5),
            "A_imag": _w((lambda *s: torch.randn(*s, dtype=torch.bfloat16) * 0.05)(D, N) * 3.14),
            "C_real": _w((lambda *s: torch.randn(*s, dtype=torch.bfloat16) * 0.05)(D, N) / N ** 0.5),
            "C_imag": _w((lambda *s: torch.randn(*s, dtype=torch.bfloat16) * 0.05)(D, N) / N ** 0.5),
            "log_dt": _w((lambda *s: torch.randn(*s, dtype=torch.bfloat16) * 0.05)(D) * 0.5 - 4.0),
            "D_skip": _w((lambda *s: torch.randn(*s, dtype=torch.bfloat16) * 0.05)(D)),
        }
    _A_in = _A_setup()

    def _B_setup():
        B, S, D, H = 1, 2048, 640, 32
        Dh = D // H
        return {
            "x": _w((lambda *s: torch.randn(*s, dtype=torch.bfloat16) * 0.05)(B, S, D)),
            "wq": _w((lambda *s: torch.randn(*s, dtype=torch.bfloat16) * 0.8)(D, H * Dh)),
            "wk": _w((lambda *s: torch.randn(*s, dtype=torch.bfloat16) * 0.8)(D, Dh)),
            "wv": _w((lambda *s: torch.randn(*s, dtype=torch.bfloat16) * 0.05)(D, Dh)),
            "wo": _w((lambda *s: torch.randn(*s, dtype=torch.bfloat16) * 0.05)(H * Dh, D)),
        }
    _B_in = _B_setup()

    return {
        "A_u": _A_in["u"],
        "A_log_A_real": _A_in["log_A_real"],
        "A_A_imag": _A_in["A_imag"],
        "A_C_real": _A_in["C_real"],
        "A_C_imag": _A_in["C_imag"],
        "A_log_dt": _A_in["log_dt"],
        "A_D_skip": _A_in["D_skip"],
        "B_x": _B_in["x"],
        "B_wq": _B_in["wq"],
        "B_wk": _B_in["wk"],
        "B_wv": _B_in["wv"],
        "B_wo": _B_in["wo"],
        "gate_w": _w((lambda *s: torch.randn(*s, dtype=torch.bfloat16) * 0.05)(640) * 16.0),
    }

def reference(A_u, A_log_A_real, A_A_imag, A_C_real, A_C_imag, A_log_dt, A_D_skip, B_x, B_wq, B_wk, B_wv, B_wo, gate_w):
    def _A_ref(u, log_A_real, A_imag, C_real, C_imag, log_dt, D_skip):
        L = u.shape[1]
        dt = torch.exp(log_dt)
        A = -torch.exp(log_A_real) + 1j * A_imag
        C = (C_real + 1j * C_imag) * dt[:, None]
        pos = (lambda x, dt: x.to(dt))(torch.arange(L), log_dt.dtype)
        P = torch.exp((A * dt[:, None])[:, :, None] * pos[None, None, :])
        K = 2.0 * torch.einsum("dn,dnl->dl", C, P).real
        L2 = 2 * L
        u_t = (lambda x, *d: x.permute(*d))(u, 0, 2, 1)
        Kf = (lambda x, *a, **k: torch.fft.rfft(x.float(), *a, **k))(K, L2)
        Uf = (lambda x, *a, **k: torch.fft.rfft(x.float(), *a, **k))(u_t, L2)
        y = (lambda x, *a, **k: torch.fft.irfft(x, *a, **k).to(torch.bfloat16))(Uf * Kf[None, :, :], L2)[:, :, :L]
        y = (lambda x, *d: x.permute(*d))(y, 0, 2, 1)
        return y + u * D_skip[None, None, :]

    def _B_ref(x, wq, wk, wv, wo):
        B, S, D = x.shape
        H = 32
        Dh = D // H
        q = (lambda x, *d: x.permute(*d))((x @ wq).reshape(B, S, H, Dh), 0, 2, 1, 3)
        k = x @ wk
        v = x @ wv
        scores = torch.einsum("bhqd,bkd->bhqk", q, k) * (Dh ** -0.5)
        p = _softmax(scores, axis=-1)
        o = torch.einsum("bhqk,bkd->bhqd", p, v)
        return (lambda x, *d: x.permute(*d))(o, 0, 2, 1, 3).reshape(B, S, H * Dh) @ wo

    x = A_u
    g = _sigmoid((x * gate_w).sum(-1, keepdims=True))
    a = _A_ref(x, A_log_A_real, A_A_imag, A_C_real, A_C_imag, A_log_dt, A_D_skip)
    b = _B_ref(x, B_wq, B_wk, B_wv, B_wo)
    return g * a + (1 - g) * b
```

```python
import re

TRANS = ("v_exp_f32", "v_log_f32", "v_rcp_f32", "v_rsq_f32", "v_sqrt_f32", "v_sin_f32", "v_cos_f32",
         "v_exp_f16", "v_rcp_iflag_f32")

def regs_of(tok):
    tok = tok.strip()
    tok = re.sub(r"^-", "", tok)
    m = re.match(r"^abs\((.*)\)$", tok)
    if m: tok = m.group(1)
    tok = tok.strip("|")
    m = re.match(r"^([vsa])(\d+)$", tok)
    if m: return {(m.group(1), int(m.group(2)))}
    m = re.match(r"^([vsa])\[(\d+):(\d+)\]$", tok)
    if m: return {(m.group(1), i) for i in range(int(m.group(2)), int(m.group(3)) + 1)}
    if tok in ("vcc", "vcc_lo", "vcc_hi"): return {("vcc", 0)}
    if tok in ("exec", "exec_lo", "exec_hi"): return {("exec", 0)}
    if tok == "m0": return {("m0", 0)}
    return set()

class Ins:
    __slots__ = ("text", "op", "w", "r", "kind", "passes", "srcc", "srcab", "label", "target", "ws", "dpp", "data", "lanesel")
    def __init__(self, text):
        self.text = text
        self.label = None; self.target = None
        self.w = set(); self.r = set(); self.kind = "other"; self.passes = 0
        self.srcc = set(); self.srcab = set(); self.ws = 1; self.dpp = False; self.data = set(); self.lanesel = set()
        t = text.split(";")[0].strip()
        if t.endswith(":"):
            self.label = t[:-1]; self.kind = "label"; self.op = ""; self.ws = 0; return
        if t.startswith(".") or not t:
            self.kind = "directive"; self.op = ""; self.ws = 0; return
        parts = t.split(None, 1)
        op = self.op = parts[0]
        rest = parts[1] if len(parts) > 1 else ""
        ops = []
        depth = 0; cur = ""
        for ch in rest:
            if ch in "[(": depth += 1
            if ch in "])": depth -= 1
            if ch == "," and depth == 0:
                ops.append(cur.strip()); cur = ""
            else:
                cur += ch
        if cur.strip(): ops.append(cur.strip())
        mods = ""
        if ops:
            last = ops[-1].split(None, 1)
            ops[-1] = last[0]
            if len(last) > 1: mods = last[1]
        R = [regs_of(o) for o in ops]
        if op == "s_nop":
            self.kind = "nop"; self.ws = int(ops[0], 0) + 1
        elif op.startswith("s_cbranch") or op == "s_branch":
            self.kind = "branch"; self.target = ops[0]
            if "vcc" in op: self.r |= {("vcc", 0)}
        elif op in ("s_waitcnt", "s_barrier", "s_endpgm", "s_setprio", "s_sleep", "buffer_wbl2", "buffer_inv"):
            self.kind = "ctl"
        elif op.startswith("s_load") or op.startswith("s_memtime") or op.startswith("s_memrealtime"):
            self.kind = "smem"; self.w = R[0]
            for x in R[1:]: self.r |= x
        elif op.startswith("s_cmp") or op.startswith("s_bitcmp"):
            self.kind = "salu"
            for x in R: self.r |= x
        elif op.startswith("s_"):
            self.kind = "salu"; self.w = set(R[0])
            for x in R[1:]: self.r |= x
            if "saveexec" in op: self.w |= {("exec", 0)}
        elif op.startswith("v_mfma") or op.startswith("v_smfmac"):
            self.kind = "mfma"; self.w = R[0]; self.srcab = R[1] | R[2]; self.srcc = R[3]
            self.r = self.srcab | self.srcc
            if "32x32x16" in op or "32x32x8" in op: self.passes = 8
            elif "16x16x32" in op or "16x16x16" in op: self.passes = 4
            elif "32x32x4_2b" in op: self.passes = 16
            else: raise ValueError("unknown mfma " + op)
        elif op.startswith("v_"):
            self.kind = "valu"
            if op.startswith("v_cmp"):
                self.w = set(R[0])
                for x in R[1:]: self.r |= x
                assert not op.startswith("v_cmpx")
            elif op.startswith("v_permlane") and "swap" in op:
                self.w = R[0] | R[1]; self.r = R[0] | R[1]; self.kind = "permlane"
            elif op.startswith("v_readfirstlane") or op.startswith("v_readlane"):
                self.w = R[0]; self.r = set(R[1]); self.kind = "readlane"
                if len(R) > 2: self.lanesel = R[2]; self.r |= R[2]
            else:
                self.w = set(R[0])
                src = R[1:]
                if op in ("v_add_co_u32", "v_sub_co_u32", "v_addc_co_u32", "v_subb_co_u32", "v_mad_u64_u32"):
                    self.w |= R[1]; src = R[2:]
                for x in src: self.r |= x
                if op.startswith("v_fmac") or op.startswith("v_dot2c") or op.startswith("v_pk_fmac") or "UNUSED_PRESERVE" in mods or op.startswith("v_writelane"):
                    self.r |= R[0]
                if "_dpp" in op or "row_" in mods or "quad_perm" in mods or "wave_" in mods:
                    self.dpp = True; self.r |= R[0]
        elif op.startswith("ds_"):
            self.kind = "ds"
            if op.startswith("ds_read") or op.startswith("ds_bpermute") or op.startswith("ds_permute") or op.startswith("ds_swizzle") or "_rtn" in op:
                self.w = R[0]
                for x in R[1:]: self.r |= x
                if "d16" in op: self.r |= R[0]
            else:
                for x in R: self.r |= x
        elif op.startswith("buffer_") or op.startswith("global_"):
            self.kind = "vmem"
            islds = bool(re.search(r"\blds\b", mods)) or "load_lds" in op
            if islds:
                for x in R: self.r |= x
                self.r |= {("m0", 0)}; self.kind = "vmem_lds"
            elif "load" in op:
                self.w = R[0]
                for x in R[1:]: self.r |= x
                if "d16" in op: self.r |= R[0]
            elif "atomic" in op:
                for x in R: self.r |= x
                if "sc0" in mods: self.w = R[0]
            else:
                for x in R: self.r |= x
                if "x4" in op or "x3" in op:
                    self.data = R[0] if op.startswith("buffer_") else R[1]
        else:
            raise ValueError("unknown instruction: " + text)

    @property
    def is_valu(self): return self.kind in ("valu", "permlane", "readlane")

def vset(s): return {x for x in s if x[0] in "va"}
def sset(s): return {x for x in s if x[0] in ("s", "vcc")}

def need(p, c):
    n = 0
    if p.is_valu:
        pw = vset(p.w)
        if c.kind == "mfma" and pw & c.r: n = max(n, 2)
        if c.kind == "permlane" and pw & c.r: n = max(n, 2)
        if c.kind == "valu" and c.dpp and pw & c.r: n = max(n, 2)
        if c.kind == "readlane" and pw & c.r: n = max(n, 1)
        if p.op in TRANS and c.is_valu and c.op not in TRANS and pw & c.r: n = max(n, 1)
        if p.op.startswith("v_dot") and (c.is_valu or c.kind in ("vmem", "ds", "mfma")) and pw & (c.r | c.w):
            if not (c.op == p.op): n = max(n, 3)
            else: n = max(n, 3 if pw & (c.r - c.w) else 0)
        if ("sdwa" in p.op) and c.is_valu and pw & (c.r | c.w): n = max(n, 1)
        ps = sset(p.w)
        if ps:
            if c.is_valu and ps & c.r: n = max(n, 2)
            if c.lanesel & ps: n = max(n, 4)
            if c.kind in ("vmem", "vmem_lds") and ps & c.r: n = max(n, 5)
            if c.kind == "branch" and ps & c.r: n = max(n, 5)
            if c.kind in ("salu", "smem") and ps & c.r: n = max(n, 1)
    if p.kind == "mfma":
        P = p.passes
        if c.kind == "mfma":
            if p.w & c.srcc:
                if p.w == c.srcc and c.passes == P: n = max(n, 0 if P >= 4 else 2)
                else: n = max(n, P + 2)
            if p.w & c.srcab: n = max(n, P + 4)
            if (p.w & c.w) and not (p.w & c.srcc): n = max(n, P + 2)
        elif c.is_valu or c.kind in ("vmem", "vmem_lds", "ds"):
            if p.w & (c.r | c.w): n = max(n, P + 4)
            if c.is_valu and p.srcc & c.w: n = max(n, P - 1)
    if p.kind == "salu" and ("m0", 0) in p.w and c.kind == "vmem_lds": n = max(n, 1)
    if p.data and (p.data & c.w):
        n = max(n, 2 if c.is_valu or c.kind == "mfma" else 1)
    return n

MAXW = 20

class Asm:
    def __init__(self):
        self.ins = []
    def __call__(self, text):
        for line in text.split("\n"):
            if line.strip(): self.ins.append(Ins(line.strip()))
    def label(self, name): self(name + ":")

    def fix_hazards(self, verbose=True):
        changed = True; total = 0
        while changed:
            changed = False
            ins = self.ins
            labels = {x.label: i for i, x in enumerate(ins) if x.label}
            srcs = {}
            for i, x in enumerate(ins):
                if x.kind == "branch": srcs.setdefault(labels[x.target], []).append(i)
            for ci, c in enumerate(ins):
                if c.kind in ("label", "directive", "nop", "ctl"): continue
                worst = 0; why = None
                stack = [(ci - 1, 0)]; seen = set()
                while stack:
                    i, dist = stack.pop()
                    while i >= 0 and dist < MAXW:
                        if (i, dist) in seen: break
                        seen.add((i, dist))
                        p = ins[i]
                        if p.kind == "label":
                            for s in srcs.get(i, []): stack.append((s, dist))
                            if i > 0 and ins[i - 1].op in ("s_branch", "s_endpgm"): break
                        else:
                            n = need(p, c) - dist
                            if n > worst: worst = n; why = p
                            dist += p.ws
                        i -= 1
                if worst > 0:
                    if verbose: print(f"  [hazard] +{worst} before '{c.text}' (after '{why.text}')")
                    k = worst
                    new = []
                    while k > 0:
                        t = min(k, 16); new.append(Ins(f"s_nop {t-1}")); k -= t
                    self.ins[ci:ci] = new
                    total += worst
                    changed = True
                    break
        return total

    def max_regs(self):
        mv = ms = ma = -1
        for x in self.ins:
            for t, n in (x.w | x.r):
                if t == "v": mv = max(mv, n)
                elif t == "s": ms = max(ms, n)
                elif t == "a": ma = max(ma, n)
        return mv, ms, ma

    def text(self):
        out = []
        for x in self.ins:
            out.append(x.text if x.kind in ("label", "directive") else "    " + x.text)
        return "\n".join(out)

class VQ:
    def __init__(self): self.q = []
    def push(self, tag): self.q.append(tag)
    def wait(self, tag):
        idx = max(i for i, t in enumerate(self.q) if t == tag)
        n = len(self.q) - 1 - idx
        self.q = self.q[idx + 1:]
        return n

class Alloc:
    def __init__(self, start, kind="v"): self.n = start; self.kind = kind
    def __call__(self, cnt=1, align=None):
        if align is None: align = 1 if cnt == 1 else 2
        self.n = (self.n + align - 1) // align * align
        r = self.n; self.n += cnt
        return r

def v(n, cnt=1): return f"v{n}" if cnt == 1 else f"v[{n}:{n+cnt-1}]"
def s(n, cnt=1): return f"s{n}" if cnt == 1 else f"s[{n}:{n+cnt-1}]"
```

```python
import sys
from asmlib import Asm, VQ, Alloc, v, s

NAME = "gated_mix__ssm_conv_s4d__grouped_kv_mqa__prompt"
KA_U, KA_LOGA, KA_AIM, KA_CRE, KA_CIM, KA_LOGDT, KA_DSKIP = 0, 8, 16, 24, 32, 40, 48
KA_WQ, KA_WK, KA_WV, KA_WO, KA_GATE, KA_OUT, KA_DBG, KA_WS = 64, 72, 80, 88, 96, 104, 112, 120
WS_Q, WS_O, WS_UT, WS_YT, WS_KR = 0x000000, 0x280000, 0x500000, 0x780000, 0xA00000
WS_KV, WS_KN, WS_G, WS_END = 0xD00000, 0xD40000, 0xD41000, 0xD50000
KR_STRIDE = 4224
XBYTES = 2048 * 1280
LOG2E = 0x3fb8aa3b
INV2PI = 0x3e22f983
QKSCALE = 0x3ea52b0c
ONES_BF16 = 0x3f803f80

def srd(k, base, ptr, nbytes):
    k(f"s_mov_b32 {s(base)}, {s(ptr)}")
    k(f"s_and_b32 {s(base+1)}, {s(ptr+1)}, 0xffff")
    k(f"s_mov_b32 {s(base+2)}, {hex(nbytes)}")
    k(f"s_mov_b32 {s(base+3)}, 0x00020000")

def wave_max(k, x, t):
    for r in (8, 4, 2, 1):
        k(f"v_max_f32_dpp {v(x)}, {v(x)}, {v(x)} row_ror:{r} row_mask:0xf bank_mask:0xf")
    k(f"v_mov_b32 {v(t)}, {v(x)}")
    k(f"v_permlane16_swap_b32 {v(x)}, {v(t)}")
    k(f"v_max_f32 {v(x)}, {v(x)}, {v(t)}")
    k(f"v_mov_b32 {v(t)}, {v(x)}")
    k(f"v_permlane32_swap_b32 {v(x)}, {v(t)}")
    k(f"v_max_f32 {v(x)}, {v(x)}, {v(t)}")

def pack_store16(k, acc, pk, voff, srd_, soff, vq=None, tag=None, off2=32):
    for i in range(8):
        k(f"v_cvt_pk_bf16_f32 {v(pk+i)}, {v(acc+2*i)}, {v(acc+2*i+1)}")
    for p in (0, 4):
        k(f"v_permlane32_swap_b32 {v(pk+p)}, {v(pk+p+2)}")
        k(f"v_permlane32_swap_b32 {v(pk+p+1)}, {v(pk+p+3)}")
    k(f"buffer_store_dwordx4 {v(pk,4)}, {v(voff)}, {s(srd_,4)}, {soff} offen")
    k(f"buffer_store_dwordx4 {v(pk+4,4)}, {v(voff)}, {s(srd_,4)}, {soff} offen offset:{off2}")

G_SLOT = 24576
def gemm_core(k, A, SX, SW, SWS, sXoff, sWoff, sChunk, sRb, sCb, with_ut, mid_hook=None):
    sT, sT2, sM0x, sM0w, sWv = 40, 41, 42, 43, 44
    vq = VQ()
    t0, t1, t2 = A(), A(), A()
    vXsrc, vWsrc = A(), A()
    k(f"v_lshrrev_b32 {v(t0)}, 6, v0")
    k(f"v_readfirstlane_b32 {s(sWv)}, {v(t0)}")
    k(f"v_lshrrev_b32 {v(t0)}, 3, v0")
    k(f"v_mul_u32_u24 {v(vXsrc)}, 1280, {v(t0)}")
    k(f"v_lshrrev_b32 {v(t1)}, 4, v0")
    k(f"v_xor_b32 {v(t1)}, {v(t1)}, v0")
    k(f"v_and_b32 {v(t1)}, 7, {v(t1)}")
    k(f"v_lshl_add_u32 {v(vXsrc)}, {v(t1)}, 4, {v(vXsrc)}")
    k(f"v_bfe_u32 {v(t0)}, v0, 4, 2")
    k(f"v_lshrrev_b32 {v(t1)}, 6, v0")
    k(f"v_lshl_add_u32 {v(t1)}, {v(t1)}, 3, {v(t0)}")
    k(f"v_mul_u32_u24 {v(vWsrc)}, 1280, {v(t1)}")
    k(f"v_bfe_u32 {v(t1)}, v0, 2, 2")
    k(f"v_xor_b32 {v(t1)}, {v(t1)}, {v(t0)}")
    k(f"v_lshl_add_u32 {v(vWsrc)}, {v(t1)}, 6, {v(vWsrc)}")
    k(f"v_and_b32 {v(t1)}, 3, v0")
    k(f"v_lshl_add_u32 {v(vWsrc)}, {v(t1)}, 4, {v(vWsrc)}")
    k(f"s_lshl_b32 {s(sM0x)}, {s(sWv)}, 10")
    k(f"s_lshl_b32 {s(sM0w)}, {s(sWv)}, 11")
    k(f"s_add_u32 {s(sM0w)}, {s(sM0w)}, 8192")

    def dma(j):
        slot = j % 6
        k(f"s_lshl_b32 {s(sT)}, {s(sChunk)}, 7")
        k(f"s_add_u32 m0, {s(sM0x)}, {slot*G_SLOT}")
        k(f"s_add_u32 {s(sT)}, {s(sT)}, {s(sXoff)}")
        k(f"buffer_load_dwordx4 {v(vXsrc)}, {s(SX,4)}, {s(sT)} offen lds")
        k(f"s_mul_i32 {s(sT2)}, {s(sChunk)}, 81920")
        k(f"s_add_u32 m0, {s(sM0w)}, {slot*G_SLOT}")
        k(f"s_add_u32 {s(sT2)}, {s(sT2)}, {s(sWoff)}")
        k(f"buffer_load_dwordx4 {v(vWsrc)}, {s(SW,4)}, {s(sT2)} offen lds")
        k(f"s_add_u32 m0, {s(sM0w)}, {slot*G_SLOT+1024}")
        k(f"s_add_u32 {s(sT2)}, {s(sT2)}, 5120")
        k(f"buffer_load_dwordx4 {v(vWsrc)}, {s(SW,4)}, {s(sT2)} offen lds")
        k(f"s_add_u32 {s(sChunk)}, {s(sChunk)}, 1")
        k(f"s_cmp_eq_u32 {s(sChunk)}, 10")
        k(f"s_cselect_b32 {s(sChunk)}, 0, {s(sChunk)}")
        for _ in range(3): vq.push(("c", j))
    for j in range(6): dma(j)
    if mid_hook: mid_hook(vq)
    vXr = [A() for _ in range(8)]
    vWr = [A(), A()]
    k(f"v_bfe_u32 {v(t0)}, v0, 8, 1")
    k(f"v_and_b32 {v(t1)}, 31, v0")
    k(f"v_lshl_add_u32 {v(t0)}, {v(t0)}, 5, {v(t1)}")
    k(f"v_bfe_u32 {v(t1)}, v0, 1, 3")
    k(f"v_bfe_u32 {v(t2)}, v0, 5, 1")
    k(f"v_xor_b32 {v(t1)}, {v(t1)}, {v(t2)}")
    k(f"v_lshlrev_b32 {v(t1)}, 4, {v(t1)}")
    k(f"v_lshl_add_u32 {v(vXr[0])}, {v(t0)}, 7, {v(t1)}")
    for i in range(1, 4): k(f"v_xor_b32 {v(vXr[i])}, {32*i}, {v(vXr[0])}")
    for i in range(4): k(f"v_add_u32 {v(vXr[4+i])}, {3*G_SLOT}, {v(vXr[i])}")
    k(f"v_bfe_u32 {v(t0)}, v0, 2, 2")
    k(f"v_lshl_add_u32 {v(t1)}, {v(t2)}, 3, {v(t0)}")
    k(f"v_lshlrev_b32 {v(vWr[0])}, 8, {v(t1)}")
    k(f"v_bfe_u32 {v(t1)}, v0, 6, 2")
    k(f"v_xor_b32 {v(t1)}, {v(t1)}, {v(t0)}")
    k(f"v_lshl_add_u32 {v(vWr[0])}, {v(t1)}, 6, {v(vWr[0])}")
    k(f"v_bfe_u32 {v(t1)}, v0, 4, 1")
    k(f"v_lshl_add_u32 {v(vWr[0])}, {v(t1)}, 5, {v(vWr[0])}")
    k(f"v_and_b32 {v(t1)}, 3, v0")
    k(f"v_lshl_add_u32 {v(vWr[0])}, {v(t1)}, 3, {v(vWr[0])}")
    k(f"v_add_u32 {v(vWr[0])}, 8192, {v(vWr[0])}")
    k(f"v_add_u32 {v(vWr[1])}, {3*G_SLOT}, {v(vWr[0])}")
    if with_ut:
        vUr = [A(), A()]; vUo = A(); vU = A(4, 4); sUo = 45
        k(f"v_bfe_u32 {v(t0)}, v0, 8, 1")
        k(f"v_bfe_u32 {v(t1)}, v0, 4, 2")
        k(f"v_lshl_add_u32 {v(t0)}, {v(t0)}, 2, {v(t1)}")
        k(f"v_lshlrev_b32 {v(vUo)}, 4, {v(t0)}")
        k(f"v_bfe_u32 {v(t1)}, v0, 2, 2")
        k(f"v_lshl_add_u32 {v(t0)}, {v(t0)}, 3, {v(t1)}")
        k(f"v_bfe_u32 {v(t1)}, {v(t0)}, 1, 3")
        k(f"v_bfe_u32 {v(t2)}, v0, 6, 2")
        k(f"v_lshlrev_b32 {v(t2)}, 1, {v(t2)}")
        k(f"v_xor_b32 {v(t1)}, {v(t1)}, {v(t2)}")
        k(f"v_bfe_u32 {v(t2)}, v0, 1, 1")
        k(f"v_xor_b32 {v(t1)}, {v(t1)}, {v(t2)}")
        k(f"v_lshlrev_b32 {v(t1)}, 4, {v(t1)}")
        k(f"v_lshl_add_u32 {v(vUr[0])}, {v(t0)}, 7, {v(t1)}")
        k(f"v_and_b32 {v(t1)}, 1, v0")
        k(f"v_lshl_add_u32 {v(vUr[0])}, {v(t1)}, 3, {v(vUr[0])}")
        k(f"v_xor_b32 {v(vUr[1])}, 32, {v(vUr[0])}")
        k(f"v_add_u32 {v(vUr[1])}, 512, {v(vUr[1])}")
        k(f"v_bfe_u32 {v(t0)}, v0, 6, 2")
        k(f"v_and_b32 {v(t1)}, 15, v0")
        k(f"v_lshl_add_u32 {v(t0)}, {v(t0)}, 4, {v(t1)}")
        k(f"v_lshl_add_u32 {v(vUo)}, {v(t0)}, 12, {v(vUo)}")
        k(f"s_lshl_b32 {s(sUo)}, {s(sCb)}, 19")
        k(f"s_lshl_b32 {s(sT)}, {s(sRb)}, 7")
        k(f"s_add_u32 {s(sUo)}, {s(sUo)}, {s(sT)}")
        k(f"s_add_u32 {s(sUo)}, {s(sUo)}, {hex(WS_UT)}")
    acc = A(16, 4)
    fa = [[A(4, 4) for _ in range(4)] for _ in range(2)]
    fb = [[A(4, 4) for _ in range(4)] for _ in range(2)]
    for j in range(11):
        if j < 10:
            k(f"s_waitcnt vmcnt({vq.wait(('c', j))}) lgkmcnt(0)")
            k("s_barrier")
        else:
            k("s_waitcnt lgkmcnt(0)")
        if 1 <= j <= 4: dma(j + 5)
        if with_ut and j in (1, 2):
            k(f"buffer_store_dwordx4 {v(vU,4)}, {v(vUo)}, {s(SWS,4)}, {s(sUo)} offen")
            vq.push("ut")
            if j == 1: k(f"s_add_u32 {s(sUo)}, {s(sUo)}, {64*4096}")
        reads = []
        if j < 10:
            slot = j % 6; hi = slot // 3; base = (slot % 3) * G_SLOT
            for st in range(4):
                r = [f"ds_read_b128 {v(fb[j%2][st],4)}, {v(vXr[4*hi+st])} offset:{base}"]
                for t in range(2):
                    r.append(f"ds_read_b64_tr_b16 {v(fa[j%2][st]+2*t,2)}, {v(vWr[hi])} offset:{base+st*4096+t*1024}")
                reads.append(r)
        for st in range(4):
            if reads:
                for r in reads[st]: k(r)
            if j >= 1:
                c = "0" if (j == 1 and st == 0) else v(acc, 16)
                k(f"v_mfma_f32_32x32x16_bf16 {v(acc,16)}, {v(fa[(j-1)%2][st],4)}, {v(fb[(j-1)%2][st],4)}, {c}")
        if with_ut and j in (0, 1):
            for t in range(2):
                k(f"ds_read_b64_tr_b16 {v(vU+2*t,2)}, {v(vUr[t])} offset:{j*G_SLOT}")
    return acc, vq, (t0, t1, t2)

def tile_out_offset(k, vo, t0, t1):
    k(f"v_bfe_u32 {v(t0)}, v0, 8, 1")
    k(f"v_and_b32 {v(t1)}, 31, v0")
    k(f"v_lshl_add_u32 {v(t0)}, {v(t0)}, 5, {v(t1)}")
    k(f"v_mul_u32_u24 {v(vo)}, 1280, {v(t0)}")
    k(f"v_bfe_u32 {v(t0)}, v0, 6, 2")
    k(f"v_lshl_add_u32 {v(vo)}, {v(t0)}, 6, {v(vo)}")
    k(f"v_bfe_u32 {v(t0)}, v0, 5, 1")
    k(f"v_lshl_add_u32 {v(vo)}, {v(t0)}, 4, {v(vo)}")

def role_q(k):
    SX, SW, SWS = 8, 12, 16
    k(f"s_load_dwordx2 s[4:5], s[0:1], {KA_U}")
    k(f"s_load_dwordx2 s[6:7], s[0:1], {KA_WQ}")
    k(f"s_load_dwordx2 s[20:21], s[0:1], {KA_WS}")
    sRb, sCb, sXoff, sWoff, sChunk = 32, 33, 34, 35, 36
    k(f"s_and_b32 {s(sRb)}, s31, 3")
    k(f"s_lshl_b32 s30, s30, 2")
    k(f"s_add_u32 {s(sRb)}, {s(sRb)}, s30")
    k(f"s_lshr_b32 {s(sCb)}, s31, 2")
    k(f"s_mul_i32 {s(sXoff)}, {s(sRb)}, 81920")
    k(f"s_lshl_b32 {s(sWoff)}, {s(sCb)}, 8")
    k(f"s_lshl_b32 {s(sChunk)}, {s(sCb)}, 1")
    k("s_waitcnt lgkmcnt(0)")
    srd(k, SX, 4, XBYTES); srd(k, SW, 6, 640 * 1280); srd(k, SWS, 20, WS_END)
    A = Alloc(1)
    acc, vq, (t0, t1, t2) = gemm_core(k, A, SX, SW, SWS, sXoff, sWoff, sChunk, sRb, sCb, True)
    vo = A(); pk = A(8, 4)
    tile_out_offset(k, vo, t0, t1)
    k(f"s_add_u32 s37, {s(sXoff)}, {s(sWoff)}")
    if WS_Q: k(f"s_add_u32 s37, s37, {hex(WS_Q)}")
    pack_store16(k, acc, pk, vo, SWS, "s37")
    k("s_endpgm")

R2_WK, R2_WV, R2_GATE, R2_RING, R2_SLOT = 0, 25600, 51200, 53248, 16384
def role_kv(k):
    SX, SWK, SWV, SG, SWS = 8, 12, 16, 24, 28
    k(f"s_load_dwordx2 s[4:5], s[0:1], {KA_U}")
    k(f"s_load_dwordx4 s[36:39], s[0:1], {KA_WK}")
    k(f"s_load_dwordx2 s[6:7], s[0:1], {KA_GATE}")
    k(f"s_load_dwordx2 s[20:21], s[0:1], {KA_WS}")
    sRb, sXoff, sWv, sT, sM0 = 32, 33, 34, 35, 40
    k(f"s_lshl_b32 {s(sRb)}, s30, 1")
    k(f"s_add_u32 {s(sRb)}, {s(sRb)}, s31")
    k(f"s_mul_i32 {s(sXoff)}, {s(sRb)}, {128*1280}")
    A = Alloc(1)
    t0, t1, t2 = A(), A(), A()
    vL16, vXsrc = A(), A()
    k(f"v_lshrrev_b32 {v(t0)}, 6, v0")
    k(f"v_readfirstlane_b32 {s(sWv)}, {v(t0)}")
    k(f"v_and_b32 {v(t0)}, 63, v0")
    k(f"v_lshlrev_b32 {v(vL16)}, 4, {v(t0)}")
    k(f"v_lshrrev_b32 {v(t1)}, 6, v0")
    k(f"v_bfe_u32 {v(t2)}, v0, 3, 3")
    k(f"v_lshl_add_u32 {v(t1)}, {v(t1)}, 4, {v(t2)}")
    k(f"v_mul_u32_u24 {v(vXsrc)}, 1280, {v(t1)}")
    k(f"v_bfe_u32 {v(t1)}, v0, 4, 2")
    k(f"v_xor_b32 {v(t1)}, {v(t1)}, v0")
    k(f"v_and_b32 {v(t1)}, 7, {v(t1)}")
    k(f"v_lshl_add_u32 {v(vXsrc)}, {v(t1)}, 4, {v(vXsrc)}")
    vXsrc2 = A()
    k(f"v_xor_b32 {v(vXsrc2)}, 64, {v(vXsrc)}")
    k("s_waitcnt lgkmcnt(0)")
    srd(k, SX, 4, XBYTES); srd(k, SWK, 36, 25600); srd(k, SWV, 38, 25600); srd(k, SG, 6, 1280); srd(k, SWS, 20, WS_END)
    vq = VQ()
    for w, (sr, so, m0v) in enumerate(((SWK, 24576, R2_WK + 24576), (SWV, 24576, R2_WV + 24576), (SG, 0, R2_GATE), (SG, 1024, R2_GATE + 1024))):
        k(f"s_cmp_lg_u32 {s(sWv)}, {w}")
        k(f"s_cbranch_scc1 L_r2_x{w}")
        k(f"s_mov_b32 m0, {m0v}")
        k(f"s_mov_b32 {s(sT)}, {so}")
        k(f"buffer_load_dwordx4 {v(vL16)}, {s(sr,4)}, {s(sT)} offen lds")
        k.label(f"L_r2_x{w}")
    k(f"s_mul_i32 {s(sT)}, {s(sWv)}, 3072")
    for sr, base in ((SWK, R2_WK), (SWV, R2_WV)):
        k(f"s_add_u32 m0, {s(sT)}, {base}")
        for i in range(3):
            k(f"buffer_load_dwordx4 {v(vL16)}, {s(sr,4)}, {s(sT)} offen offset:{1024*i} lds")
    k(f"s_lshl_b32 {s(sM0)}, {s(sWv)}, 11")
    def dma(j, q):
        slot = j % 6
        k(f"s_add_u32 m0, {s(sM0)}, {R2_RING + slot*R2_SLOT}")
        k(f"s_add_u32 {s(sT)}, {s(sXoff)}, {j*128}")
        k(f"buffer_load_dwordx4 {v(vXsrc)}, {s(SX,4)}, {s(sT)} offen lds")
        k(f"s_add_u32 m0, {s(sM0)}, {R2_RING + slot*R2_SLOT + 1024}")
        k(f"s_add_u32 {s(sT)}, {s(sXoff)}, {j*128 + 8*1280}")
        k(f"buffer_load_dwordx4 {v(vXsrc2)}, {s(SX,4)}, {s(sT)} offen lds")
        q.push(("c", j)); q.push(("c", j))
    for j in range(6): dma(j, vq)
    vXr = [A() for _ in range(8)]
    vWr, vGr = A(), A()
    k(f"v_bfe_u32 {v(t0)}, v0, 6, 2")
    k(f"v_and_b32 {v(t1)}, 31, v0")
    k(f"v_lshl_add_u32 {v(t0)}, {v(t0)}, 5, {v(t1)}")
    k(f"v_bfe_u32 {v(t1)}, v0, 1, 3")
    k(f"v_bfe_u32 {v(t2)}, v0, 5, 1")
    k(f"v_xor_b32 {v(t1)}, {v(t1)}, {v(t2)}")
    k(f"v_lshlrev_b32 {v(t1)}, 4, {v(t1)}")
    k(f"v_lshl_add_u32 {v(vXr[0])}, {v(t0)}, 7, {v(t1)}")
    k(f"v_add_u32 {v(vXr[0])}, {R2_RING}, {v(vXr[0])}")
    for i in range(1, 4): k(f"v_xor_b32 {v(vXr[i])}, {32*i}, {v(vXr[0])}")
    for i in range(4): k(f"v_add_u32 {v(vXr[4+i])}, {3*R2_SLOT}, {v(vXr[i])}")
    k(f"v_bfe_u32 {v(t0)}, v0, 2, 2")
    k(f"v_lshl_add_u32 {v(t0)}, {v(t2)}, 3, {v(t0)}")
    k(f"v_mul_u32_u24 {v(vWr)}, 40, {v(t0)}")
    k(f"v_bfe_u32 {v(t1)}, v0, 4, 1")
    k(f"v_lshl_add_u32 {v(vWr)}, {v(t1)}, 5, {v(vWr)}")
    k(f"v_and_b32 {v(t1)}, 3, v0")
    k(f"v_lshl_add_u32 {v(vWr)}, {v(t1)}, 3, {v(vWr)}")
    k(f"v_lshlrev_b32 {v(vGr)}, 4, {v(t2)}")
    k(f"v_add_u32 {v(vGr)}, {R2_GATE}, {v(vGr)}")
    acc = A(16, 4)
    fw = [[A(4, 4) for _ in range(4)] for _ in range(2)]
    fx = [[A(4, 4) for _ in range(4)] for _ in range(2)]
    pk = A(16, 4)
    vo = A()
    sRec = 41
    k(f"s_and_b32 {s(sRec)}, {s(sWv)}, 3")
    k(f"s_lshl_b32 {s(sT)}, {s(sRb)}, 2")
    k(f"s_add_u32 s42, {s(sRec)}, {s(sT)}")
    k(f"s_mul_i32 {s(sRec)}, s42, 3072")
    k(f"s_add_u32 {s(sRec)}, {s(sRec)}, {hex(WS_KV)}")
    k("s_mov_b32 s44, 0xfff00000")
    k("s_mov_b32 s45, 0xfff00000")
    k(f"s_cmp_ge_u32 {s(sWv)}, 4")
    k("s_cbranch_scc1 L_r2_v")
    import copy
    for role in (0, 1):
        q = copy.deepcopy(vq)
        if role: k.label("L_r2_v")
        wbase = R2_WV if role else R2_WK
        for j in range(11):
            if j < 10:
                k(f"s_waitcnt vmcnt({q.wait(('c', j))}) lgkmcnt(0)")
                k("s_barrier")
            else:
                k("s_waitcnt lgkmcnt(0)")
            if 1 <= j <= 4: dma(j + 5, q)
            for st in range(4):
                if j < 10:
                    slot = j % 6; hi = slot // 3; base = (slot % 3) * R2_SLOT
                    k(f"ds_read_b128 {v(fx[j%2][st],4)}, {v(vXr[4*hi+st])} offset:{base}")
                    for t in range(2):
                        k(f"ds_read_b64_tr_b16 {v(fw[j%2][st]+2*t,2)}, {v(vWr)} offset:{wbase + (64*j+16*st+4*t)*40}")
                    if role == 0:
                        k("s_mov_b64 exec, s[44:45]")
                        k(f"ds_read_b128 {v(fw[j%2][st],4)}, {v(vGr)} offset:{(64*j+16*st)*2}")
                        k("s_mov_b64 exec, -1")
                if j >= 1:
                    c = "0" if (j == 1 and st == 0) else v(acc, 16)
                    a, b = fw[(j-1) % 2][st], fx[(j-1) % 2][st]
                    if role: a, b = b, a
                    k(f"v_mfma_f32_32x32x16_bf16 {v(acc,16)}, {v(a,4)}, {v(b,4)}, {c}")
        if role == 0:
            k(f"s_mov_b32 s46, {hex(QKSCALE)}")
            k(f"s_mov_b32 s47, 0xffff0000")
            for i in range(6):
                k(f"v_cvt_pk_bf16_f32 {v(pk+i)}, {v(acc+2*i)}, {v(acc+2*i+1)}")
            for i in range(6):
                k(f"v_lshlrev_b32 {v(acc+2*i)}, 16, {v(pk+i)}")
                k(f"v_and_b32 {v(acc+2*i+1)}, s47, {v(pk+i)}")
            for i in range(12):
                k(f"v_mul_f32 {v(acc+i)}, s46, {v(acc+i)}")
            for i in range(6):
                k(f"v_cvt_pk_bf16_f32 {v(pk+i)}, {v(acc+2*i)}, {v(acc+2*i+1)}")
            k(f"v_mul_f32 {v(t0)}, {v(acc)}, {v(acc)}")
            for i in range(1, 8): k(f"v_fmac_f32 {v(t0)}, {v(acc+i)}, {v(acc+i)}")
            k("s_mov_b32 exec_hi, 0")
            for i in range(8, 12): k(f"v_fmac_f32 {v(t0)}, {v(acc+i)}, {v(acc+i)}")
            k("s_not_b64 exec, exec")
            k(f"v_mov_b32 {v(pk+4)}, {hex(ONES_BF16)}")
            k(f"v_mov_b32 {v(pk+5)}, {hex(ONES_BF16)}")
            k("s_mov_b64 exec, -1")
            k(f"v_and_b32 {v(t1)}, 31, v0")
            k(f"v_lshlrev_b32 {v(vo)}, 4, {v(t1)}")
            k(f"v_lshl_add_u32 {v(vo)}, {v(t2)}, 3, {v(vo)}")
            k(f"buffer_store_dwordx2 {v(pk,2)}, {v(vo)}, {s(SWS,4)}, {s(sRec)} offen")
            k(f"buffer_store_dwordx2 {v(pk+2,2)}, {v(vo)}, {s(SWS,4)}, {s(sRec)} offen offset:512")
            k(f"v_lshrrev_b32 {v(vo)}, 1, {v(vL16)}")
            k(f"buffer_store_dwordx2 {v(pk+4,2)}, {v(vo)}, {s(SWS,4)}, {s(sRec)} offen offset:1024")
            k(f"v_mov_b32 {v(pk+8)}, {v(t0)}")
            k(f"v_permlane32_swap_b32 {v(t0)}, {v(pk+8)}")
            k(f"v_add_f32 {v(t0)}, {v(t0)}, {v(pk+8)}")
            wave_max(k, t0, pk + 8)
            k(f"s_lshl_b32 s43, s42, 2")
            k(f"s_add_u32 s43, s43, {hex(WS_KN)}")
            k(f"v_mov_b32 {v(pk+9)}, 0")
            k("s_mov_b64 exec, 1")
            k(f"buffer_store_dword {v(t0)}, {v(pk+9)}, {s(SWS,4)}, s43 offen")
            k("s_mov_b64 exec, -1")
            g = pk + 10
            k(f"v_cvt_pk_bf16_f32 {v(g)}, {v(acc+12)}, {v(acc+12)}")
            k(f"v_and_b32 {v(g)}, s47, {v(g)}")
            k(f"v_mul_f32 {v(g)}, {hex(LOG2E ^ 0x80000000)}, {v(g)}")
            k(f"v_exp_f32 {v(g)}, {v(g)}")
            k(f"v_add_f32 {v(g)}, 1.0, {v(g)}")
            k(f"v_rcp_f32 {v(g)}, {v(g)}")
            k(f"v_cvt_pk_bf16_f32 {v(g)}, {v(g)}, {v(g)}")
            k(f"v_and_b32 {v(g)}, s47, {v(g)}")
            k(f"v_sub_f32 {v(g+1)}, 1.0, {v(g)}")
            k(f"v_cvt_pk_bf16_f32 {v(g+1)}, {v(g+1)}, {v(g+1)}")
            k(f"v_and_b32 {v(g+1)}, s47, {v(g+1)}")
            k(f"v_lshlrev_b32 {v(vo)}, 3, {v(t1)}")
            k(f"s_lshl_b32 s43, s42, 8")
            k(f"s_add_u32 s43, s43, {hex(WS_G)}")
            k("s_mov_b32 exec_hi, 0")
            k(f"buffer_store_dwordx2 {v(g,2)}, {v(vo)}, {s(SWS,4)}, s43 offen")
            k("s_endpgm")
        else:
            for i in range(8):
                k(f"v_cvt_pk_bf16_f32 {v(pk+i)}, {v(acc+2*i)}, {v(acc+2*i+1)}")
            k("s_mov_b64 exec, s[44:45]")
            for i in range(8): k(f"v_mov_b32 {v(pk+i)}, {hex(ONES_BF16)}")
            k("s_mov_b32 s44, 0x00ffffff")
            k("s_mov_b32 s45, 0x00ffffff")
            k("s_mov_b64 exec, -1")
            k(f"v_and_b32 {v(t1)}, 31, v0")
            k(f"v_mul_u32_u24 {v(vo)}, 384, {v(t2)}")
            k(f"v_lshl_add_u32 {v(vo)}, {v(t1)}, 4, {v(vo)}")
            k("s_mov_b64 exec, s[44:45]")
            k(f"buffer_store_dwordx4 {v(pk,4)}, {v(vo)}, {s(SWS,4)}, {s(sRec)} offen offset:1536")
            k(f"buffer_store_dwordx4 {v(pk+4,4)}, {v(vo)}, {s(SWS,4)}, {s(sRec)} offen offset:{1536+768}")
            k("s_endpgm")

KG_ROW = 528
KG_WAVE = 32 * KG_ROW
def cmul(k, d, a, b):
    k(f"v_pk_mul_f32 {v(d,2)}, {v(a,2)}, {v(b,2)} op_sel:[0,0] op_sel_hi:[1,0]")
    k(f"v_pk_fma_f32 {v(d,2)}, {v(a,2)}, {v(b,2)}, {v(d,2)} op_sel:[1,1,0] op_sel_hi:[0,1,1] neg_lo:[1,0,0]")
def cmul2(k, d, a, b):
    for n in (0, 2):
        k(f"v_pk_mul_f32 {v(d+n,2)}, {v(a+n,2)}, {v(b+n,2)} op_sel:[0,0] op_sel_hi:[1,0]")
    for n in (0, 2):
        k(f"v_pk_fma_f32 {v(d+n,2)}, {v(a+n,2)}, {v(b+n,2)}, {v(d+n,2)} op_sel:[1,1,0] op_sel_hi:[0,1,1] neg_lo:[1,0,0]")

def role_kgen(k):
    SP = [8, 12, 16, 24]; SDT, SWS = 28, 32
    k(f"s_load_dwordx8 s[40:47], s[0:1], {KA_LOGA}")
    k(f"s_load_dwordx2 s[4:5], s[0:1], {KA_LOGDT}")
    k(f"s_load_dwordx2 s[20:21], s[0:1], {KA_WS}")
    A = Alloc(1)
    t0, t1, vL = A(), A(), A()
    sWv, sD, sT, sMask = 36, 37, 38, 39
    k(f"v_lshrrev_b32 {v(t0)}, 6, v0")
    k(f"v_readfirstlane_b32 {s(sWv)}, {v(t0)}")
    k(f"v_and_b32 {v(vL)}, 63, v0")
    k(f"s_mul_i32 {s(sD)}, s30, 10")
    k(f"s_add_u32 {s(sD)}, {s(sD)}, s31")
    k(f"s_lshl_b32 {s(sD)}, {s(sD)}, 3")
    k(f"s_add_u32 {s(sD)}, {s(sD)}, {s(sWv)}")
    k(f"s_mov_b32 {s(sMask)}, 0xffff0000")
    k("s_waitcnt lgkmcnt(0)")
    for i in range(4): srd(k, SP[i], 40 + 2 * i, 640 * 256)
    srd(k, SDT, 4, 1280); srd(k, SWS, 20, WS_END)
    P = A(4, 4); vdt = A()
    k(f"v_lshlrev_b32 {v(t0)}, 2, {v(vL)}")
    k(f"s_lshl_b32 {s(sT)}, {s(sD)}, 8")
    for i in range(4):
        k(f"buffer_load_dword {v(P+i)}, {v(t0)}, {s(SP[i],4)}, {s(sT)} offen")
    k(f"s_lshl_b32 {s(sT)}, {s(sD)}, 1")
    k(f"v_mov_b32 {v(t1)}, 0")
    k(f"buffer_load_ushort {v(vdt)}, {v(t1)}, {s(SDT,4)}, {s(sT)} offen")
    vWa, vRa = A(), A()
    k(f"s_mul_i32 {s(sT)}, {s(sWv)}, {KG_WAVE}")
    k(f"v_lshlrev_b32 {v(vWa)}, 3, {v(vL)}")
    k(f"v_add_u32 {v(vWa)}, {s(sT)}, {v(vWa)}")
    k(f"v_and_b32 {v(t0)}, 31, v0")
    k(f"v_mul_u32_u24 {v(vRa)}, {KG_ROW}, {v(t0)}")
    k(f"v_bfe_u32 {v(t0)}, v0, 5, 1")
    k(f"v_lshl_add_u32 {v(vRa)}, {v(t0)}, 4, {v(vRa)}")
    k(f"v_add_u32 {v(vRa)}, {s(sT)}, {v(vRa)}")
    al, be = A(2), A(2)
    X0 = A(4, 4)
    k("s_waitcnt vmcnt(0)")
    k(f"v_lshlrev_b32 {v(vdt)}, 16, {v(vdt)}")
    k(f"v_mul_f32 {v(vdt)}, {hex(LOG2E)}, {v(vdt)}")
    k(f"v_exp_f32 {v(vdt)}, {v(vdt)}")
    k(f"v_lshlrev_b32 {v(al)}, 16, {v(P)}")
    k(f"v_and_b32 {v(al+1)}, {s(sMask)}, {v(P)}")
    k(f"v_cvt_pk_bf16_f32 {v(vdt)}, {v(vdt)}, {v(vdt)}")
    k(f"v_mul_f32 {v(al)}, {hex(LOG2E)}, {v(al)}")
    k(f"v_mul_f32 {v(al+1)}, {hex(LOG2E)}, {v(al+1)}")
    k(f"v_and_b32 {v(vdt)}, {s(sMask)}, {v(vdt)}")
    k(f"v_exp_f32 {v(al)}, {v(al)}")
    k(f"v_exp_f32 {v(al+1)}, {v(al+1)}")
    k(f"v_lshlrev_b32 {v(be)}, 16, {v(P+1)}")
    k(f"v_and_b32 {v(be+1)}, {s(sMask)}, {v(P+1)}")
    k(f"v_cvt_pk_bf16_f32 {v(t0)}, {v(al)}, {v(al+1)}")
    k(f"v_lshlrev_b32 {v(al)}, 16, {v(t0)}")
    k(f"v_and_b32 {v(al+1)}, {s(sMask)}, {v(t0)}")
    for n in range(2):
        k(f"v_mul_f32 {v(al+n)}, {v(al+n)}, {v(vdt)}")
        k(f"v_mul_f32 {v(be+n)}, {v(be+n)}, {v(vdt)}")
    for n in range(2):
        k(f"v_mul_f32 {v(al+n)}, {hex(LOG2E ^ 0x80000000)}, {v(al+n)}")
        k(f"v_mul_f32 {v(be+n)}, {hex(INV2PI)}, {v(be+n)}")
    k(f"v_lshlrev_b32 {v(X0)}, 16, {v(P+2)}")
    k(f"v_lshlrev_b32 {v(X0+1)}, 16, {v(P+3)}")
    k(f"v_and_b32 {v(X0+2)}, {s(sMask)}, {v(P+2)}")
    k(f"v_and_b32 {v(X0+3)}, {s(sMask)}, {v(P+3)}")
    cm = A()
    k(f"v_max3_f32 {v(cm)}, abs({v(X0)}), abs({v(X0+1)}), abs({v(X0+2)})")
    k(f"v_max_f32 {v(cm)}, abs({v(X0+3)}), {v(cm)}" if False else f"v_max3_f32 {v(cm)}, abs({v(X0+3)}), {v(cm)}, {v(cm)}")
    wave_max(k, cm, t0)
    k(f"v_frexp_exp_i32_f32 {v(cm)}, {v(cm)}")
    k(f"v_sub_u32 {v(t0)}, 14, {v(cm)}")
    for i in range(4): k(f"v_ldexp_f32 {v(X0+i)}, {v(X0+i)}, {v(t0)}")
    k(f"v_subrev_u32 {v(cm)}, 13, {v(cm)}")
    k(f"v_ldexp_f32 {v(vdt)}, {v(vdt)}, {v(cm)}")
    Z = {}
    e2, th = A(2), A(2)
    for p in (8, 1, 256):
        z = Z[p] = A(4, 4)
        pf = {1: "1.0", 8: "0x41000000", 256: "0x43800000"}[p]
        for n in range(2):
            k(f"v_mul_f32 {v(e2+n)}, {pf}, {v(al+n)}")
            k(f"v_mul_f32 {v(th+n)}, {pf}, {v(be+n)}")
        for n in range(2):
            k(f"v_exp_f32 {v(e2+n)}, {v(e2+n)}")
            k(f"v_fract_f32 {v(th+n)}, {v(th+n)}")
        for n in range(2):
            k(f"v_cos_f32 {v(z+2*n)}, {v(th+n)}")
            k(f"v_sin_f32 {v(z+2*n+1)}, {v(th+n)}")
        k(f"v_pk_mul_f32 {v(z,2)}, {v(z,2)}, {v(e2,2)} op_sel:[0,0] op_sel_hi:[1,0]")
        k(f"v_pk_mul_f32 {v(z+2,2)}, {v(z+2,2)}, {v(e2,2)} op_sel:[0,1] op_sel_hi:[1,1]")
    pkt = [A(2) for _ in range(4)]
    def put(src, row, idx, neg, dst=None):
        d = pkt[idx % 4] if dst is None else dst
        ng = "-" if neg else ""
        k(f"v_cvt_pk_f16_f32 {v(d)}, {v(src)}, {ng}{v(src+1)}")
        k(f"v_cvt_pk_f16_f32 {v(d+1)}, {v(src+2)}, {ng}{v(src+3)}")
        if dst is None: k(f"ds_write_b64 {v(vWa)}, {v(d,2)} offset:{row*KG_ROW}")
    k(f"v_mov_b32 {v(pkt[0])}, 0x3c00")
    k(f"v_mov_b32 {v(pkt[0]+1)}, 0x3c00")
    k(f"ds_write_b64 {v(vWa)}, {v(pkt[0],2)}")
    put(Z[8], 1, 1, False)
    ya = [A(4, 4), A(4, 4)]
    prev = Z[8]
    for b in range(2, 32):
        cur = ya[b % 2]
        cmul2(k, cur, prev, Z[8])
        put(cur, b, b, False)
        prev = cur
    yf = A(64, 4)
    k("s_waitcnt lgkmcnt(0)")
    for ks in range(16):
        k(f"ds_read_b128 {v(yf+4*ks,4)}, {v(vRa)} offset:{32*ks}")
    def row_of(j, h): return 8 * (j >> 2) + 4 * h + (j & 3)
    xp = {}
    def keep(src, e):
        xp[e] = A(2); put(src, 0, 0, True, xp[e])
    Xe = {0: X0}
    keep(X0, 0)
    tmp = ya[0]
    for e in range(1, 8):
        Xe[e] = A(4, 4) if e % 2 == 0 else tmp
        cmul2(k, Xe[e], Xe[e-1], Z[1]); keep(Xe[e], e)
    Xe[8] = A(4, 4); cmul2(k, Xe[8], X0, Z[8])
    cur = {e: Xe[e] for e in (0, 2, 4, 6, 8)}
    alt = {e: A(4, 4) for e in (0, 4, 8)}
    for blk in range(1, 8):
        es = (0, 2, 4, 6, 8) if blk == 1 else (0, 4, 8) if blk <= 3 else (0, 8)
        for e in es:
            d = alt[e] if e in alt else tmp
            cmul2(k, d, cur[e], Z[256]); keep(d, 256 * blk + e)
            if e in alt: alt[e], cur[e] = cur[e], d
    rows = {}
    for j in range(8):
        rows[row_of(j, 0)] = j
        rows[row_of(j, 1)] = 256 + (0, 0, 2, 4, 4, 4, 6, 8)[j]
    for j, e in ((8, 0), (9, 4), (10, 8)):
        rows[row_of(j, 0)] = 512 + e; rows[row_of(j, 1)] = 768 + e
    for j, e in ((11, 0), (12, 8)):
        rows[row_of(j, 0)] = 1024 + e; rows[row_of(j, 1)] = 1280 + e
    for j, e in ((13, 0), (14, 8)):
        rows[row_of(j, 0)] = 1536 + e; rows[row_of(j, 1)] = 1792 + e
    k("s_waitcnt lgkmcnt(0)")
    for r, e in sorted(rows.items()):
        k(f"ds_write_b64 {v(vWa)}, {v(xp[e],2)} offset:{r*KG_ROW}")
    k("s_waitcnt lgkmcnt(0)")
    xf = A(32, 4); acc = A(16, 4)
    for ks in range(8): k(f"ds_read_b128 {v(xf+4*ks,4)}, {v(vRa)} offset:{32*ks}")
    for ks in range(16):
        k(f"s_waitcnt lgkmcnt({min(7, 15-ks)})")
        k(f"v_mfma_f32_32x32x16_f16 {v(acc,16)}, {v(xf+4*(ks%8),4)}, {v(yf+4*ks,4)}, {'0' if ks == 0 else v(acc,16)}")
        if ks < 8: k(f"ds_read_b128 {v(xf+4*ks,4)}, {v(vRa)} offset:{32*(ks+8)}")
    o = yf; vo = vWa
    k(f"v_lshlrev_b32 {v(t0)}, 4, {v(vL)}")
    k(f"v_sub_u32 {v(vo)}, 1008, {v(t0)}")
    k(f"s_mul_i32 {s(sT)}, {s(sD)}, {KR_STRIDE}")
    k(f"s_add_u32 {s(sT)}, {s(sT)}, {hex(WS_KR)}")
    k("s_mov_b32 s48, 0xaaaaaaaa")
    k("s_mov_b32 s49, 0xaaaaaaaa")
    for i in range(15): k(f"v_mul_f32 {v(acc+i)}, {v(acc+i)}, {v(vdt)}")
    def cv(d, lo, hi): k(f"v_cvt_pk_bf16_f32 {v(d)}, {v(lo)}, {v(hi)}")
    for i in range(4): cv(o + i, acc + 7 - 2 * i, acc + 6 - 2 * i)
    k(f"buffer_store_dwordx4 {v(o,4)}, {v(vo)}, {s(SWS,4)}, {s(sT)} offen offset:3072")
    cv(o+4, acc+10, acc+10); cv(o+5, acc+9, acc+9); cv(o+6, acc+9, acc+8); cv(o+7, acc+8, acc+8)
    k(f"buffer_store_dwordx4 {v(o+4,4)}, {v(vo)}, {s(SWS,4)}, {s(sT)} offen offset:2048")
    for gi, (c0, off) in enumerate(((acc + 11, 1024), (acc + 13, 0))):
        d = o + 8 + 4 * gi
        k(f"v_cndmask_b32 {v(t1)}, {v(c0)}, {v(c0+1)}, s[48:49]")
        cv(d, c0+1, c0+1); cv(d+1, c0+1, t1); cv(d+2, c0, c0); cv(d+3, c0, c0)
        k(f"buffer_store_dwordx4 {v(d,4)}, {v(vo)}, {s(SWS,4)}, {s(sT)} offen offset:{off}")
    for i in range(4): k(f"v_mov_b32 {v(xf+i)}, 0")
    k(f"s_add_u32 {s(sT)}, {s(sT)}, 4096")
    k("s_mov_b64 exec, 0xff")
    k(f"buffer_store_dwordx4 {v(xf,4)}, {v(t0)}, {s(SWS,4)}, {s(sT)} offen")
    k("s_endpgm")

def kernel_prep():
    k = Asm()
    k("s_cmp_ge_u32 s2, 256")
    k("s_cbranch_scc1 L_p_end")
    k("s_and_b32 s30, s2, 7")
    k("s_lshr_b32 s31, s2, 3")
    k("s_cmp_ge_u32 s31, 20")
    k("s_cbranch_scc1 L_p_not_q")
    role_q(k)
    k.label("L_p_not_q")
    k("s_cmp_ge_u32 s31, 30")
    k("s_cbranch_scc1 L_p_kv")
    k("s_sub_u32 s31, s31, 20")
    role_kgen(k)
    k.label("L_p_kv")
    k("s_sub_u32 s31, s31, 30")
    role_kv(k)
    k.label("L_p_end")
    k("s_endpgm")
    return k

AT_SLOT = 24576
AT_CONV = 3 * AT_SLOT
AT_CW = 9216
AT_LDS = AT_CONV + 8 * AT_CW
def kernel_attn():
    k = Asm()
    SWS = 8
    k("s_cmp_ge_u32 s2, 256")
    k("s_cbranch_scc1 L_a_end")
    k(f"s_load_dwordx2 s[4:5], s[0:1], {KA_WS}")
    A = Alloc(1)
    t0, t1, t2, vL, vL16 = A(), A(), A(), A(), A()
    sWv, sRb, sG, sT, sT2, sD, sTy, sQo, sKV, sM0, sSlot, sCnt, sCb = 12, 13, 14, 15, 16, 17, 18, 19, 20, 21, 22, 23, 24
    k(f"v_lshrrev_b32 {v(t0)}, 6, v0")
    k(f"v_readfirstlane_b32 {s(sWv)}, {v(t0)}")
    k(f"v_and_b32 {v(vL)}, 63, v0")
    k(f"v_lshlrev_b32 {v(vL16)}, 4, {v(vL)}")
    k(f"s_and_b32 {s(sRb)}, s2, 7")
    k(f"s_lshl_b32 {s(sRb)}, {s(sRb)}, 2")
    k(f"s_bfe_u32 {s(sT)}, s2, 0x20003")
    k(f"s_add_u32 {s(sRb)}, {s(sRb)}, {s(sT)}")
    k(f"s_lshr_b32 {s(sG)}, s2, 5")
    k(f"s_lshl_b32 {s(sT)}, {s(sRb)}, 1")
    k(f"s_and_b32 {s(sT2)}, {s(sWv)}, 1")
    k(f"s_add_u32 {s(sT)}, {s(sT)}, {s(sT2)}")
    k(f"s_mul_i32 {s(sQo)}, {s(sT)}, {32*1280}")
    k(f"s_lshl_b32 {s(sT)}, {s(sG)}, 2")
    k(f"s_lshr_b32 {s(sT2)}, {s(sWv)}, 1")
    k(f"s_add_u32 {s(sT)}, {s(sT)}, {s(sT2)}")
    k(f"s_mul_i32 {s(sT)}, {s(sT)}, 40")
    k(f"s_add_u32 {s(sQo)}, {s(sQo)}, {s(sT)}")
    k(f"s_mul_i32 {s(sT)}, s2, 171")
    k(f"s_lshr_b32 {s(sT)}, {s(sT)}, 9")
    k(f"s_mul_i32 {s(sT2)}, {s(sT)}, 3")
    k(f"s_sub_u32 {s(sT2)}, s2, {s(sT2)}")
    units = [[(0,0),(0,1),(0,2),(1,0),(1,1),(1,2),(2,1),(2,2)],
             [(2,0),(3,0),(3,1),(3,2),(4,0),(4,1),(4,2),(5,0)],
             [(5,1),(5,2),(6,0),(6,1),(6,2),(7,0),(7,1),(7,2)]]
    ch = [sum(c << (4 * w) for w, (c, t) in enumerate(u)) for u in units]
    ty = [sum(t << (4 * w) for w, (c, t) in enumerate(u)) for u in units]
    k(f"s_mov_b32 {s(sD)}, {hex(ch[0])}")
    k(f"s_mov_b32 {s(sTy)}, {hex(ty[0])}")
    for p in (1, 2):
        k(f"s_cmp_eq_u32 {s(sT2)}, {p}")
        k(f"s_cselect_b32 {s(sD)}, {hex(ch[p])}, {s(sD)}")
        k(f"s_cselect_b32 {s(sTy)}, {hex(ty[p])}, {s(sTy)}")
    k(f"s_lshl_b32 {s(sT2)}, {s(sWv)}, 2")
    k(f"s_lshr_b32 {s(sD)}, {s(sD)}, {s(sT2)}")
    k(f"s_and_b32 {s(sD)}, {s(sD)}, 15")
    k(f"s_lshr_b32 {s(sTy)}, {s(sTy)}, {s(sT2)}")
    k(f"s_and_b32 {s(sTy)}, {s(sTy)}, 15")
    k(f"s_lshl_b32 {s(sT)}, {s(sT)}, 3")
    k(f"s_add_u32 {s(sD)}, {s(sD)}, {s(sT)}")
    k(f"s_cmp_ge_u32 s2, 240")
    k(f"s_cselect_b32 {s(sD)}, 0, {s(sD)}")
    k(f"s_cselect_b32 {s(sTy)}, 3, {s(sTy)}")
    k("s_waitcnt lgkmcnt(0)")
    srd(k, SWS, 4, WS_END)
    Q1, Q2, vKN, vQo = A(4, 4), A(2), A(), A()
    vC, vH = A(), A()
    k(f"v_and_b32 {v(vC)}, 31, v0")
    k(f"v_bfe_u32 {v(vH)}, v0, 5, 1")
    k(f"v_mul_u32_u24 {v(vQo)}, 1280, {v(vC)}")
    k(f"v_lshl_add_u32 {v(t0)}, {v(vH)}, 4, {v(vQo)}")
    k(f"s_add_u32 {s(sT)}, {s(sQo)}, {hex(WS_Q)}")
    k(f"buffer_load_dwordx4 {v(Q1,4)}, {v(t0)}, {s(SWS,4)}, {s(sT)} offen")
    k(f"buffer_load_dwordx2 {v(Q2,2)}, {v(vQo)}, {s(SWS,4)}, {s(sT)} offen offset:32")
    k(f"v_lshlrev_b32 {v(t1)}, 2, {v(vL)}")
    k(f"s_mov_b32 {s(sT)}, {hex(WS_KN)}")
    k(f"buffer_load_dword {v(vKN)}, {v(t1)}, {s(SWS,4)}, {s(sT)} offen")
    k(f"s_mul_i32 {s(sM0)}, {s(sWv)}, 3072")
    k(f"s_add_u32 {s(sKV)}, {s(sM0)}, {hex(WS_KV)}")
    def kv_dma():
        for i in range(3):
            k(f"buffer_load_dwordx4 {v(vL16)}, {s(SWS,4)}, {s(sKV)} offen offset:{1024*i} lds")
        k(f"s_add_u32 {s(sKV)}, {s(sKV)}, {AT_SLOT}")
    k(f"s_mov_b32 m0, {s(sM0)}")
    kv_dma()
    k(f"s_mul_i32 {s(sCb)}, {s(sWv)}, {AT_CW}")
    k(f"s_add_u32 {s(sCb)}, {s(sCb)}, {AT_CONV}")
    k(f"s_cmp_eq_u32 {s(sTy)}, 1")
    k(f"s_cselect_b32 {s(sT)}, 64, -1984")
    k(f"v_lshl_add_u32 {v(t0)}, {v(vL)}, 6, {s(sT)}")
    k(f"s_lshl_b32 {s(sT)}, {s(sD)}, 12")
    k(f"s_add_u32 {s(sT)}, {s(sT)}, {hex(WS_UT)}")
    for cc in range(4):
        k(f"s_add_u32 m0, {s(sCb)}, {1024*cc}")
        k(f"s_add_u32 {s(sT2)}, {s(sT)}, {16*cc}")
        k(f"buffer_load_dwordx4 {v(t0)}, {s(SWS,4)}, {s(sT2)} offen lds")
    k(f"s_cmp_eq_u32 {s(sTy)}, 2")
    k(f"s_cselect_b32 {s(sT2)}, 0, 2048")
    k(f"s_mul_i32 {s(sT)}, {s(sD)}, {KR_STRIDE}")
    k(f"s_add_u32 {s(sT)}, {s(sT)}, {s(sT2)}")
    k(f"s_add_u32 {s(sT)}, {s(sT)}, {hex(WS_KR)}")
    k(f"s_add_u32 m0, {s(sCb)}, 4096")
    k(f"v_mov_b32 {v(t1)}, {v(vL16)}")
    k("s_mov_b64 exec, 15")
    k(f"v_add_u32 {v(t1)}, 2110, {v(t1)}")
    k("s_mov_b64 exec, -1")
    k(f"buffer_load_dwordx4 {v(vL16)}, {s(SWS,4)}, {s(sT)} offen lds")
    k(f"buffer_load_dwordx4 {v(vL16)}, {s(SWS,4)}, {s(sT)} offen offset:1024 lds")
    k(f"s_sub_u32 {s(sT)}, {s(sT)}, 2110")
    k(f"buffer_load_dwordx4 {v(t1)}, {s(SWS,4)}, {s(sT)} offen offset:2048 lds")
    k(f"buffer_load_dwordx4 {v(vL16)}, {s(SWS,4)}, {s(sT)} offen offset:3072 lds")
    k(f"s_add_u32 m0, {s(sCb)}, 8192")
    k(f"s_add_u32 {s(sT)}, {s(sT)}, 4096")
    k(f"buffer_load_dwordx4 {v(vL16)}, {s(SWS,4)}, {s(sT)} offen lds")
    k(f"s_add_u32 m0, {s(sM0)}, {AT_SLOT}")
    kv_dma()
    vK1, vK2, vV, vK2b, vVb, vAa, vBa = A(), A(), A(), A(), A(), A(), A()
    k(f"v_mov_b32 {v(vK1)}, {v(vL16)}")
    k(f"v_lshlrev_b32 {v(vK2b)}, 3, {v(vL)}")
    k(f"v_add_u32 {v(vK2b)}, 1024, {v(vK2b)}")
    k(f"v_mov_b32 {v(vK2)}, {v(vK2b)}")
    k(f"v_min_u32 {v(t0)}, 20, {v(vC)}")
    k(f"v_lshlrev_b32 {v(t0)}, 4, {v(t0)}")
    k("s_mov_b32 s26, 0xf0000000")
    k("s_mov_b32 s27, 0xf0000000")
    k("s_mov_b64 exec, s[26:27]")
    k(f"v_mov_b32 {v(t0)}, -16")
    k("s_mov_b64 exec, -1")
    k(f"v_mul_u32_u24 {v(vVb)}, 384, {v(vH)}")
    k(f"v_add_u32 {v(vVb)}, {v(vVb)}, {v(t0)}")
    k(f"v_add_u32 {v(vVb)}, 1536, {v(vVb)}")
    k(f"v_mov_b32 {v(vV)}, {v(vVb)}")
    k(f"v_lshlrev_b32 {v(vBa)}, 10, {v(vH)}")
    k(f"v_lshl_add_u32 {v(vBa)}, {v(vC)}, 4, {v(vBa)}")
    k(f"v_add_u32 {v(vBa)}, {s(sCb)}, {v(vBa)}")
    k(f"v_sub_u32 {v(t0)}, 31, {v(vC)}")
    k(f"v_and_b32 {v(t1)}, 1, {v(t0)}")
    k(f"v_mul_u32_u24 {v(vAa)}, 2112, {v(t1)}")
    k(f"v_lshrrev_b32 {v(t0)}, 1, {v(t0)}")
    k(f"v_lshl_add_u32 {v(vAa)}, {v(t0)}, 2, {v(vAa)}")
    k(f"v_lshl_add_u32 {v(vAa)}, {v(vH)}, 4, {v(vAa)}")
    k(f"v_add_u32 {v(vAa)}, {s(sCb)}, {v(vAa)}")
    k(f"v_add_u32 {v(vAa)}, 4096, {v(vAa)}")
    S = [A(16, 4), A(16, 4)]
    O, C = A(16, 4), A(16, 4)
    P = A(8, 4); K1 = A(4, 4); K2 = A(2); V0 = A(4, 4); V1 = A(4, 4); CA = A(4, 4); CB = A(4, 4)
    vM = A()
    for r in list(range(O, O + 16)) + list(range(C, C + 16)) + list(range(P + 4, P + 8)) + list(range(V1, V1 + 4)):
        k(f"v_mov_b32 {v(r)}, 0")
    k("s_mov_b32 s28, 0")
    k("s_mov_b32 s29, -1")
    k("s_waitcnt vmcnt(15)")
    k("s_mov_b64 exec, s[28:29]")
    k(f"v_mov_b32 {v(Q2)}, 0")
    k(f"v_mov_b32 {v(Q2+1)}, 0")
    k("s_mov_b64 exec, -1")
    k(f"v_mov_b32 {v(vM)}, 0")
    for r in list(range(Q1, Q1 + 4)) + [Q2, Q2 + 1]:
        k(f"v_dot2_f32_bf16 {v(vM)}, {v(r)}, {v(r)}, {v(vM)}")
    wave_max(k, vKN, t0)
    k(f"v_mov_b32 {v(t0)}, {v(vM)}")
    k(f"v_permlane32_swap_b32 {v(vM)}, {v(t0)}")
    k(f"v_add_f32 {v(vM)}, {v(vM)}, {v(t0)}")
    k(f"v_mul_f32 {v(vM)}, {v(vM)}, {v(vKN)}")
    k(f"v_sqrt_f32 {v(vM)}, {v(vM)}")
    k(f"v_mul_f32 {v(vM)}, 0x3f828f5c, {v(vM)}")
    k(f"v_cmp_lt_f32 vcc, 0x42200000, {v(vM)}")
    k("s_cbranch_vccz L_a_fast")
    k(f"v_mov_b32 {v(vM)}, 0xff800000")
    k(f"s_mov_b32 {s(sT)}, {hex(WS_KV)}")
    k(f"s_mov_b32 {s(sCnt)}, 64")
    k.label("L_a_fb")
    k(f"buffer_load_dwordx4 {v(K1,4)}, {v(vL16)}, {s(SWS,4)}, {s(sT)} offen")
    k(f"buffer_load_dwordx2 {v(K2,2)}, {v(vK2b)}, {s(SWS,4)}, {s(sT)} offen")
    k("s_waitcnt vmcnt(0)")
    k(f"v_mfma_f32_32x32x16_bf16 {v(S[0],16)}, {v(K1,4)}, {v(Q1,4)}, 0")
    k(f"v_mfma_f32_32x32x8_bf16 {v(S[0],16)}, {v(K2,2)}, {v(Q2,2)}, {v(S[0],16)}")
    for i in range(8): k(f"v_max3_f32 {v(vM)}, {v(S[0]+2*i)}, {v(S[0]+2*i+1)}, {v(vM)}")
    k(f"s_add_u32 {s(sT)}, {s(sT)}, 3072")
    k(f"s_sub_u32 {s(sCnt)}, {s(sCnt)}, 1")
    k(f"s_cmp_lg_u32 {s(sCnt)}, 0")
    k("s_cbranch_scc1 L_a_fb")
    k(f"v_mov_b32 {v(t0)}, {v(vM)}")
    k(f"v_permlane32_swap_b32 {v(vM)}, {v(t0)}")
    k(f"v_max_f32 {v(vM)}, {v(vM)}, {v(t0)}")
    k.label("L_a_fast")
    k(f"v_and_b32 {v(t0)}, 0xffff0000, {v(vM)}")
    k(f"v_sub_f32 {v(vM)}, {v(vM)}, {v(t0)}")
    k(f"v_and_b32 {v(t1)}, 0xffff0000, {v(vM)}")
    k(f"v_sub_f32 {v(vM)}, {v(vM)}, {v(t1)}")
    k("s_mov_b64 exec, s[28:29]")
    k(f"v_cvt_pk_bf16_f32 {v(Q2)}, -{v(t0)}, -{v(t1)}")
    k(f"v_cvt_pk_bf16_f32 {v(Q2+1)}, -{v(vM)}, 0")
    k("s_mov_b64 exec, -1")
    k("s_waitcnt vmcnt(3)")
    k("s_barrier")
    k(f"ds_read_b128 {v(K1,4)}, {v(vK1)}")
    k(f"ds_read_b64 {v(K2,2)}, {v(vK2)}")
    k(f"ds_read_b128 {v(V0,4)}, {v(vV)}")
    k(f"ds_read2_b32 {v(CA,2)}, {v(vAa)} offset0:0 offset1:1")
    k(f"ds_read2_b32 {v(CA+2,2)}, {v(vAa)} offset0:2 offset1:3")
    k(f"ds_read_b128 {v(CB,4)}, {v(vBa)}")
    k("s_waitcnt lgkmcnt(4)")
    k(f"v_mfma_f32_32x32x16_bf16 {v(S[0],16)}, {v(K1,4)}, {v(Q1,4)}, 0")
    k(f"v_mfma_f32_32x32x8_bf16 {v(S[0],16)}, {v(K2,2)}, {v(Q2,2)}, {v(S[0],16)}")
    k(f"ds_read_b128 {v(K1,4)}, {v(vK1)} offset:3072")
    k(f"ds_read_b64 {v(K2,2)}, {v(vK2)} offset:3072")
    k(f"s_mov_b32 {s(sSlot)}, 0")
    k(f"s_mov_b32 {s(sCnt)}, 0")
    k("s_waitcnt lgkmcnt(0)")
    k("s_nop 7")
    k(".p2align 6")
    k.label("L_a_loop")
    for i in range(8):
        cur, nxt = S[i % 2], S[(i + 1) % 2]
        E = lambda j: k(f"v_exp_f32 {v(cur+j)}, {v(cur+j)}")
        Cv = lambda j: k(f"v_cvt_pk_bf16_f32 {v(P+j)}, {v(cur+2*j)}, {v(cur+2*j+1)}")
        if i == 6:
            k("s_waitcnt vmcnt(0)")
            k("s_barrier")
            k(f"s_add_u32 {s(sSlot)}, {s(sSlot)}, {AT_SLOT}")
            k(f"s_cmp_eq_u32 {s(sSlot)}, {3*AT_SLOT}")
            k(f"s_cselect_b32 {s(sSlot)}, 0, {s(sSlot)}")
            k(f"v_add_u32 {v(vK1)}, {s(sSlot)}, {v(vL16)}")
            k(f"v_add_u32 {v(vK2)}, {s(sSlot)}, {v(vK2b)}")
            k(f"s_cmp_ge_u32 {s(sCnt)}, 6")
            k("s_cbranch_scc1 L_a_nodma")
            k(f"s_add_u32 {s(sT)}, {s(sSlot)}, {AT_SLOT}")
            k(f"s_cmp_eq_u32 {s(sT)}, {3*AT_SLOT}")
            k(f"s_cselect_b32 {s(sT)}, 0, {s(sT)}")
            k(f"s_add_u32 m0, {s(sT)}, {s(sM0)}")
            kv_dma()
            k.label("L_a_nodma")
        ko = ((i + 2) % 8) * 3072
        k("s_waitcnt lgkmcnt(4)")
        k(f"v_mfma_f32_32x32x16_bf16 {v(nxt,16)}, {v(K1,4)}, {v(Q1,4)}, 0")
        k(f"ds_read_b128 {v(K1,4)}, {v(vK1)} offset:{ko}")
        E(0); E(1); E(2); E(3)
        k(f"v_mfma_f32_32x32x16_bf16 {v(O,16)}, {v(V1,4)}, {v(P+4,4)}, {v(O,16)}")
        k(f"ds_read_b128 {v(V1,4)}, {v(vV)} offset:{i*3072+768}")
        E(4); E(5); E(6); Cv(0); Cv(1)
        k(f"v_mfma_f32_32x32x8_bf16 {v(nxt,16)}, {v(K2,2)}, {v(Q2,2)}, {v(nxt,16)}")
        k(f"ds_read_b64 {v(K2,2)}, {v(vK2)} offset:{ko}")
        E(7); Cv(2); Cv(3); E(8); E(9)
        k("s_waitcnt lgkmcnt(3)")
        k(f"v_mfma_f32_32x32x16_bf16 {v(O,16)}, {v(V0,4)}, {v(P,4)}, {v(O,16)}")
        if i == 7: k(f"v_add_u32 {v(vV)}, {s(sSlot)}, {v(vVb)}")
        k(f"ds_read_b128 {v(V0,4)}, {v(vV)} offset:{((i+1)%8)*3072}")
        E(10); E(11); E(12); Cv(4); Cv(5)
        k(f"v_mfma_f32_32x32x16_bf16 {v(C,16)}, {v(CA,4)}, {v(CB,4)}, {v(C,16)}")
        k(f"ds_read2_b32 {v(CA,2)}, {v(vAa)} offset0:{8*(i+1)} offset1:{8*(i+1)+1}")
        k(f"ds_read2_b32 {v(CA+2,2)}, {v(vAa)} offset0:{8*(i+1)+2} offset1:{8*(i+1)+3}")
        k(f"ds_read_b128 {v(CB,4)}, {v(vBa)} offset:{((i+1)&1)*2048 + ((i+1)>>1)*16}")
        E(13); E(14); E(15); Cv(6); Cv(7)
    k(f"v_add_u32 {v(vAa)}, 256, {v(vAa)}")
    k(f"v_add_u32 {v(vBa)}, 64, {v(vBa)}")
    k(f"s_add_u32 {s(sCnt)}, {s(sCnt)}, 1")
    k(f"s_cmp_lt_u32 {s(sCnt)}, 8")
    k("s_cbranch_scc1 L_a_loop")
    k("s_waitcnt lgkmcnt(0)")
    k(f"v_mfma_f32_32x32x16_bf16 {v(O,16)}, {v(V1,4)}, {v(P+4,4)}, {v(O,16)}")
    k(f"v_add_u32 {v(t2)}, {s(sCb)}, {v(vL16)}")
    k(f"s_cmp_lg_u32 {s(sTy)}, 2")
    k("s_cbranch_scc1 L_a_e1")
    for q in range(4): k(f"ds_write_b128 {v(t2)}, {v(C+4*q,4)} offset:{1024*q}")
    k.label("L_a_e1")
    k(f"v_rcp_f32 {v(t0)}, {v(O+12)}")
    k(f"v_lshl_add_u32 {v(t1)}, {v(vH)}, 3, {v(vQo)}")
    for i in range(12): k(f"v_mul_f32 {v(O+i)}, {v(O+i)}, {v(t0)}")
    for i in range(6): k(f"v_cvt_pk_bf16_f32 {v(P+i)}, {v(O+2*i)}, {v(O+2*i+1)}")
    k(f"s_add_u32 {s(sT)}, {s(sQo)}, {hex(WS_O)}")
    k(f"buffer_store_dwordx2 {v(P,2)}, {v(t1)}, {s(SWS,4)}, {s(sT)} offen")
    k(f"buffer_store_dwordx2 {v(P+2,2)}, {v(t1)}, {s(SWS,4)}, {s(sT)} offen offset:16")
    k("s_mov_b32 exec_hi, 0")
    k(f"buffer_store_dwordx2 {v(P+4,2)}, {v(t1)}, {s(SWS,4)}, {s(sT)} offen offset:32")
    k("s_mov_b64 exec, -1")
    k("s_waitcnt lgkmcnt(0)")
    k("s_barrier")
    k(f"s_cmp_ge_u32 {s(sTy)}, 2")
    k("s_cbranch_scc1 L_a_end")
    k(f"s_cmp_eq_u32 {s(sTy)}, 0")
    k("s_cbranch_scc1 L_a_e2")
    for q in range(4): k(f"ds_read_b128 {v(S[0]+4*q,4)}, {v(t2)} offset:{AT_CW+1024*q}")
    k("s_waitcnt lgkmcnt(0)")
    for i in range(16): k(f"v_add_f32 {v(C+i)}, {v(C+i)}, {v(S[0]+i)}")
    k.label("L_a_e2")
    k(f"v_lshlrev_b32 {v(t0)}, 6, {v(vC)}")
    k(f"v_lshl_add_u32 {v(t0)}, {v(vH)}, 4, {v(t0)}")
    k(f"s_lshl_b32 {s(sT)}, {s(sD)}, 12")
    k(f"s_lshl_b32 {s(sT2)}, {s(sTy)}, 11")
    k(f"s_add_u32 {s(sT)}, {s(sT)}, {s(sT2)}")
    k(f"s_add_u32 {s(sT)}, {s(sT)}, {hex(WS_YT)}")
    pack_store16(k, C, S[1], t0, SWS, s(sT))
    k.label("L_a_end")
    k("s_endpgm")
    return k

def kernel_out():
    k = Asm()
    SW, SWS, SU, SD, SO = 12, 16, 8, 24, 28
    k("s_cmp_ge_u32 s2, 160")
    k("s_cbranch_scc1 L_o_end")
    k(f"s_load_dwordx2 s[4:5], s[0:1], {KA_U}")
    k(f"s_load_dwordx2 s[6:7], s[0:1], {KA_WO}")
    k(f"s_load_dwordx2 s[20:21], s[0:1], {KA_WS}")
    k(f"s_load_dwordx2 s[22:23], s[0:1], {KA_DSKIP}")
    k(f"s_load_dwordx2 s[46:47], s[0:1], {KA_OUT}")
    sRb, sCb, sXoff, sWoff, sChunk, sUo, sY = 32, 33, 34, 35, 36, 37, 38
    k("s_and_b32 s30, s2, 7")
    k("s_lshr_b32 s31, s2, 3")
    k(f"s_and_b32 {s(sRb)}, s31, 3")
    k(f"s_lshl_b32 s30, s30, 2")
    k(f"s_add_u32 {s(sRb)}, {s(sRb)}, s30")
    k(f"s_lshr_b32 {s(sCb)}, s31, 2")
    k(f"s_mul_i32 {s(sUo)}, {s(sRb)}, 81920")
    k(f"s_add_u32 {s(sXoff)}, {s(sUo)}, {hex(WS_O)}")
    k(f"s_lshl_b32 {s(sWoff)}, {s(sCb)}, 8")
    k(f"s_add_u32 {s(sUo)}, {s(sUo)}, {s(sWoff)}")
    k(f"s_lshl_b32 {s(sChunk)}, {s(sCb)}, 1")
    k("s_waitcnt lgkmcnt(0)")
    srd(k, SU, 4, XBYTES); srd(k, SW, 6, 640 * 1280); srd(k, SWS, 20, WS_END); srd(k, SD, 22, 1280); srd(k, SO, 46, XBYTES)
    A = Alloc(1)
    U, Dk, G, Y = A(8, 4), A(8, 4), A(2), A(16, 4)
    e0, e1, e2, vo = A(), A(), A(), A()
    def hook(vq):
        tile_out_offset(k, vo, e0, e1)
        k(f"v_lshlrev_b32 {v(e1)}, 3, {v(e0)}")
        k(f"v_sub_u32 {v(e1)}, {v(vo)}, {v(e1)}")
        for q in range(4):
            k(f"buffer_load_dwordx2 {v(U+2*q,2)}, {v(e1)}, {s(SU,4)}, {s(sUo)} offen offset:{16*q}"); vq.push("e")
        k(f"v_bfe_u32 {v(e1)}, v0, 6, 2")
        k(f"v_lshl_add_u32 {v(e1)}, {v(e1)}, 3, {v(e0)}")
        k(f"v_lshlrev_b32 {v(e2)}, 3, {v(e1)}")
        for q in range(4):
            k(f"buffer_load_dwordx2 {v(Dk+2*q,2)}, {v(e2)}, {s(SD,4)}, {s(sWoff)} offen offset:{16*q}"); vq.push("e")
        k(f"v_bfe_u32 {v(e0)}, v0, 8, 1")
        k(f"v_and_b32 {v(e2)}, 31, v0")
        k(f"v_lshl_add_u32 {v(e0)}, {v(e0)}, 5, {v(e2)}")
        k(f"v_lshlrev_b32 {v(e2)}, 3, {v(e0)}")
        k(f"s_lshl_b32 {s(sY)}, {s(sRb)}, 9")
        k(f"s_add_u32 {s(sY)}, {s(sY)}, {hex(WS_G)}")
        k(f"buffer_load_dwordx2 {v(G,2)}, {v(e2)}, {s(SWS,4)}, {s(sY)} offen"); vq.push("e")
        k(f"v_lshlrev_b32 {v(e1)}, 14, {v(e1)}")
        k(f"v_lshl_add_u32 {v(e1)}, {v(e0)}, 1, {v(e1)}")
        k(f"s_lshl_b32 {s(sY)}, {s(sCb)}, 19")
        k(f"s_lshl_b32 s39, {s(sRb)}, 7")
        k(f"s_add_u32 {s(sY)}, {s(sY)}, s39")
        k(f"s_add_u32 {s(sY)}, {s(sY)}, {hex(WS_YT)}")
        for i in range(16): k(f"v_mov_b32 {v(Y+i)}, 0")
        for i in range(16):
            k(f"s_add_u32 s39, {s(sY)}, {(8*(i//4) + i%4)*4096}")
            k(f"buffer_load_short_d16_hi {v(Y+i)}, {v(e1)}, {s(SWS,4)}, s39 offen"); vq.push("e")
    acc, vq, (t0, t1, t2) = gemm_core(k, A, SWS, SW, SWS, sXoff, sWoff, sChunk, sRb, sCb, False, hook)
    pk = A(8, 4)
    k("s_mov_b32 s39, 0xffff0000")
    for i in range(16):
        if i % 2 == 0:
            k(f"v_lshlrev_b32 {v(t0)}, 16, {v(U+i//2)}")
            k(f"v_lshlrev_b32 {v(t1)}, 16, {v(Dk+i//2)}")
        else:
            k(f"v_and_b32 {v(t0)}, s39, {v(U+i//2)}")
            k(f"v_and_b32 {v(t1)}, s39, {v(Dk+i//2)}")
        k(f"v_fmac_f32 {v(Y+i)}, {v(t0)}, {v(t1)}")
        k(f"v_mul_f32 {v(Y+i)}, {v(Y+i)}, {v(G)}")
    for i in range(16): k(f"v_fmac_f32 {v(Y+i)}, {v(acc+i)}, {v(G+1)}")
    pack_store16(k, Y, pk, vo, SO, s(sUo))
    k.label("L_o_end")
    k("s_endpgm")
    return k

def emit(kernels, path):
    ref = open(f"cdna_kernels/{NAME}.s.ref").read().split("\n")
    head = [l for l in ref if l.startswith(";") and "@launch" not in l and "Override launch" not in l and "grid=ceil" not in l]
    out = list(head)
    for name, k, grid, block, lds in kernels:
        out.append(f"; @launch kernel={name} grid=({grid},1,1) block=({block},1,1) lds={lds}")
    out.append('.amdgcn_target "amdgcn-amd-amdhsa--gfx950"')
    out.append(".text")
    seen = []
    for name, k, grid, block, lds in kernels:
        if name in [n for n, _ in seen]: continue
        print("kernel", name)
        k.fix_hazards()
        seen.append((name, k))
        out += [f".globl {name}", ".p2align 8", f".type {name},@function", f"{name}:", k.text()]
    out += ['.section .rodata,"a"']
    for name, k in seen:
        mv, ms, ma = k.max_regs()
        nv = mv + 1
        print(f"  {name}: vgpr {nv} sgpr {ms+1} instrs {len(k.ins)}")
        out += [".p2align 6", f".amdhsa_kernel {name}",
                f"  .amdhsa_next_free_vgpr {nv}", f"  .amdhsa_next_free_sgpr {max(ms+1, 16)}",
                f"  .amdhsa_accum_offset {(nv+3)//4*4}", "  .amdhsa_group_segment_fixed_size 0",
                "  .amdhsa_kernarg_size 128", "  .amdhsa_user_sgpr_count 2",
                "  .amdhsa_user_sgpr_kernarg_segment_ptr 1", "  .amdhsa_system_sgpr_workgroup_id_x 1",
                ".end_amdhsa_kernel"]
    open(path, "w").write("\n".join(out) + "\n")

if __name__ == "__main__":
    path = sys.argv[1] if len(sys.argv) > 1 else f"cdna_kernels/{NAME}.s"
    emit([("prep_kernel", kernel_prep(), 256, 512, R2_RING + 6 * R2_SLOT),
          ("attn_kernel", kernel_attn(), 256, 512, AT_LDS),
          ("outp_kernel", kernel_out(), 160, 512, 6 * G_SLOT)], path)
```

```python
import sys, os
from asmlib import Asm, VQ, Alloc, v, s

NAME = "gated_mix__ssm_conv_s4d__grouped_kv_mqa__prompt"
STAMP = os.environ.get("STAMP") == "1"
EXP = set(os.environ.get("EXP", "").split(","))
P_U, P_LOGA, P_AIM, P_CRE, P_CIM, P_LOGDT, P_DSKIP, P_BX, P_WQ, P_WK, P_WV, P_WO, P_GATE, P_OUT, P_DBG, P_WS = [36 + 2 * i for i in range(16)]
WS_O, WS_UT, WS_YT, WS_KR = 0x000000, 0x280000, 0x500000, 0x780000
WS_KV = 0xCB0000
WS_FUT, WS_FKR, WS_FKV, WS_FO, WS_FY, WS_W0 = 0xCE0000, 0xCF0000, 0xD04000, 0xD14000, 0xD1C000, 0xD1D000
WS_STAMP = 0xD20000
WS_END = 0xDA0000 if STAMP else 0xD20000
KR_COPY = 4224
KR_STRIDE = 2 * KR_COPY
REC = 2560
XBYTES = 2048 * 1280
LOG2E, INV2PI, QKSCALE, ONES = 0x3fb8aa3b, 0x3e22f983, 0x3ea52b0c, 0x3f803f80
SC = "sc1"

SWS, SU, SA, SB, SCc, SE, SF = 8, 12, 16, 20, 24, 28, 32
sWv, sRb, sG, sNon, sT, sT2, sT3, sCnt, sChunk = 68, 69, 70, 71, 72, 73, 74, 75, 76
sBaseA, sBaseB, sBaseC, sStrA, sStrB, sStrC, sM0 = 77, 78, 79, 80, 81, 82, 83
sD, sTy, sCb, sHi, sKvDone = 84, 85, 86, 88, 87
sMk = 90
sMsk16 = 92
sTau = 93
sCh0 = 6
sWoN, sWoS = 7, 3
sPend = 94
sSt = 96

SLOT = 20480
KG_BASE, KG_ROW = 5 * SLOT, 528
KG_WAVE = 32 * KG_ROW
CA_BASE, CA_CS, CA_CH = KG_BASE, 4160, KG_WAVE
UT_BASE = KG_BASE + 3 * KG_WAVE
GATE_BASE = UT_BASE + 8192
CB_ADDR = (0, 8192, UT_BASE)
QI_BASE = 20480
XCH_BASE, KNX_BASE, GX_BASE = 40960, 57344, 57856
WO_BASE, WO_PL = 32768, 25664
OB_BASE = WO_BASE + 4 * WO_PL
UL_BASE, YL_BASE = 0, 10240
KGP = 216
LDS_TOTAL = 163840

def srd(k, base, ptr, nbytes):
    k(f"s_mov_b32 {s(base)}, {s(ptr)}")
    k(f"s_and_b32 {s(base+1)}, {s(ptr+1)}, 0xffff")
    k(f"s_mov_b32 {s(base+2)}, {hex(nbytes)}")
    k(f"s_mov_b32 {s(base+3)}, 0x00020000")

vST = 255
def stamp(k, idx):
    if not STAMP: return
    k(f"s_memtime {s(sSt,2)}")
    k(f"s_memrealtime {s(sSt+2,2)}")
    k("s_waitcnt lgkmcnt(0)")
    k(f"v_writelane_b32 {v(vST)}, {s(sSt)}, {2*idx}")
    k(f"v_writelane_b32 {v(vST)}, {s(sSt+2)}, {2*idx+1}")

def stamp_dyn(k, base, trip_sgpr, mul):
    if not STAMP or ("gst" in EXP and base < 24): return
    k(f"s_memtime {s(sSt,2)}")
    k(f"s_memrealtime {s(sSt+2,2)}")
    k("s_waitcnt lgkmcnt(0)")
    k(f"s_mul_i32 {s(sSt+1)}, {s(trip_sgpr)}, {2*mul}")
    k(f"s_add_u32 m0, {s(sSt+1)}, {2*base}")
    k(f"v_writelane_b32 {v(vST)}, {s(sSt)}, m0")
    k(f"s_add_u32 m0, {s(sSt+1)}, {2*base+1}")
    k(f"v_writelane_b32 {v(vST)}, {s(sSt+2)}, m0")

def wave_max(k, x, t):
    for r in (8, 4, 2, 1):
        k(f"v_max_f32_dpp {v(x)}, {v(x)}, {v(x)} row_ror:{r} row_mask:0xf bank_mask:0xf")
    k(f"v_mov_b32 {v(t)}, {v(x)}")
    k(f"v_permlane16_swap_b32 {v(x)}, {v(t)}")
    k(f"v_max_f32 {v(x)}, {v(x)}, {v(t)}")
    k(f"v_mov_b32 {v(t)}, {v(x)}")
    k(f"v_permlane32_swap_b32 {v(x)}, {v(t)}")
    k(f"v_max_f32 {v(x)}, {v(x)}, {v(t)}")

def pack_store16(k, acc, pk, voff, srd_, soff, flags="", second=True, store=True):
    for i in range(8):
        k(f"v_cvt_pk_bf16_f32 {v(pk+i)}, {v(acc+2*i)}, {v(acc+2*i+1)}")
    for p in (0, 4):
        k(f"v_permlane32_swap_b32 {v(pk+p)}, {v(pk+p+2)}")
        k(f"v_permlane32_swap_b32 {v(pk+p+1)}, {v(pk+p+3)}")
    if not store: return
    k(f"buffer_store_dwordx4 {v(pk,4)}, {v(voff)}, {s(srd_,4)}, {soff} offen {flags}")
    if second: k(f"buffer_store_dwordx4 {v(pk+4,4)}, {v(voff)}, {s(srd_,4)}, {soff} offen offset:32 {flags}")

def cmul2(k, d, a, b):
    for n in (0, 2):
        k(f"v_pk_mul_f32 {v(d+n,2)}, {v(a+n,2)}, {v(b+n,2)} op_sel:[0,0] op_sel_hi:[1,0]")
    for n in (0, 2):
        k(f"v_pk_fma_f32 {v(d+n,2)}, {v(a+n,2)}, {v(b+n,2)}, {v(d+n,2)} op_sel:[1,1,0] op_sel_hi:[0,1,1] neg_lo:[1,0,0]")

vL, vC, vH, vL16, t0, t1, t2, t3, vG = 1, 2, 3, 4, 5, 6, 7, 8, 10
V_FREE = 12

def poll(k, name, dst, ndw, vaddr, soff, first_issued=False, after_first=None, sleep=4):
    ld = f"buffer_load_dword{'x2' if ndw == 2 else ''} {v(dst,ndw)}, {v(vaddr)}, {s(SWS,4)}, {soff} offen {SC}"
    k(f"s_mov_b32 {s(sCnt)}, 20000")
    if first_issued:
        k(f"s_branch L_{name}_chk")
    k.label(f"L_{name}_retry")
    k(ld)
    k("s_waitcnt vmcnt(0)")
    k.label(f"L_{name}_chk")
    k(f"v_cmp_ne_u32 vcc, {s(sNon)}, {v(dst)}")
    k(f"s_cbranch_vccz L_{name}_ok")
    k("s_mov_b64 exec, vcc")
    k(f"s_sleep {sleep}")
    k(f"s_sub_u32 {s(sCnt)}, {s(sCnt)}, 1")
    k(f"s_cmp_lg_u32 {s(sCnt)}, 0")
    k(f"s_cbranch_scc1 L_{name}_retry")
    k("s_endpgm")
    k.label(f"L_{name}_ok")
    k("s_mov_b64 exec, -1")
def set_flag(k, idx_sgpr, off, shift=7):
    k(f"s_lshl_b32 {s(sT3)}, {s(idx_sgpr)}, {shift}")
    k(f"s_add_u32 {s(sT3)}, {s(sT3)}, {hex(off)}")
    k(f"v_mov_b32 {v(t2)}, {s(sNon)}")
    k(f"v_mov_b32 {v(t3)}, 0")
    k("s_mov_b64 exec, 1")
    k(f"buffer_store_dword {v(t2)}, {v(t3)}, {s(SWS,4)}, {s(sT3)} offen {SC}")
    k("s_mov_b64 exec, -1")

def kgen(k, bar):
    A = Alloc(V_FREE)
    SP = [SA, SB, SCc, SE]
    for i in range(4): srd(k, SP[i], P_LOGA + 2 * i, 640 * 256)
    srd(k, SF, P_LOGDT, 1280)
    P = A(4, 4); vdt = A()
    k(f"v_lshlrev_b32 {v(t0)}, 2, {v(vL)}")
    k(f"s_lshl_b32 {s(sT)}, {s(sD)}, 8")
    for i in range(4):
        k(f"buffer_load_dword {v(P+i)}, {v(t0)}, {s(SP[i],4)}, {s(sT)} offen")
    k(f"s_lshl_b32 {s(sT)}, {s(sD)}, 1")
    k(f"v_mov_b32 {v(t1)}, 0")
    k(f"buffer_load_ushort {v(vdt)}, {v(t1)}, {s(SF,4)}, {s(sT)} offen")
    vWa, vRa = A(), A()
    k(f"s_mul_i32 {s(sT)}, {s(sWv)}, {KG_WAVE}")
    k(f"s_add_u32 {s(sT)}, {s(sT)}, {KG_BASE}")
    k(f"v_lshlrev_b32 {v(vWa)}, 3, {v(vL)}")
    k(f"v_add_u32 {v(vWa)}, {s(sT)}, {v(vWa)}")
    k(f"v_mul_u32_u24 {v(vRa)}, {KG_ROW}, {v(vC)}")
    k(f"v_lshl_add_u32 {v(vRa)}, {v(vH)}, 4, {v(vRa)}")
    k(f"v_add_u32 {v(vRa)}, {s(sT)}, {v(vRa)}")
    al, be = A(2), A(2)
    X0 = A(4, 4)
    M = s(sMsk16)
    k("s_waitcnt vmcnt(0) lgkmcnt(0)")
    stamp(k, 1)
    k(f"v_lshlrev_b32 {v(vdt)}, 16, {v(vdt)}")
    k(f"v_mul_f32 {v(vdt)}, {hex(LOG2E)}, {v(vdt)}")
    k(f"v_exp_f32 {v(vdt)}, {v(vdt)}")
    k(f"v_lshlrev_b32 {v(al)}, 16, {v(P)}")
    k(f"v_and_b32 {v(al+1)}, {M}, {v(P)}")
    k(f"v_cvt_pk_bf16_f32 {v(vdt)}, {v(vdt)}, {v(vdt)}")
    k(f"v_mul_f32 {v(al)}, {hex(LOG2E)}, {v(al)}")
    k(f"v_mul_f32 {v(al+1)}, {hex(LOG2E)}, {v(al+1)}")
    k(f"v_and_b32 {v(vdt)}, {M}, {v(vdt)}")
    k(f"v_exp_f32 {v(al)}, {v(al)}")
    k(f"v_exp_f32 {v(al+1)}, {v(al+1)}")
    k(f"v_lshlrev_b32 {v(be)}, 16, {v(P+1)}")
    k(f"v_and_b32 {v(be+1)}, {M}, {v(P+1)}")
    k(f"v_cvt_pk_bf16_f32 {v(t0)}, {v(al)}, {v(al+1)}")
    k(f"v_lshlrev_b32 {v(al)}, 16, {v(t0)}")
    k(f"v_and_b32 {v(al+1)}, {M}, {v(t0)}")
    for n in range(2):
        k(f"v_mul_f32 {v(al+n)}, {v(al+n)}, {v(vdt)}")
        k(f"v_mul_f32 {v(be+n)}, {v(be+n)}, {v(vdt)}")
    for n in range(2):
        k(f"v_mul_f32 {v(al+n)}, {hex(LOG2E ^ 0x80000000)}, {v(al+n)}")
        k(f"v_mul_f32 {v(be+n)}, {hex(INV2PI)}, {v(be+n)}")
    k(f"v_lshlrev_b32 {v(X0)}, 16, {v(P+2)}")
    k(f"v_lshlrev_b32 {v(X0+1)}, 16, {v(P+3)}")
    k(f"v_and_b32 {v(X0+2)}, {M}, {v(P+2)}")
    k(f"v_and_b32 {v(X0+3)}, {M}, {v(P+3)}")
    cm = A()
    k(f"v_max3_f32 {v(cm)}, abs({v(X0)}), abs({v(X0+1)}), abs({v(X0+2)})")
    k(f"v_max3_f32 {v(cm)}, abs({v(X0+3)}), {v(cm)}, {v(cm)}")
    wave_max(k, cm, t0)
    k(f"v_frexp_exp_i32_f32 {v(cm)}, {v(cm)}")
    k(f"v_sub_u32 {v(t0)}, 14, {v(cm)}")
    for i in range(4): k(f"v_ldexp_f32 {v(X0+i)}, {v(X0+i)}, {v(t0)}")
    k(f"v_subrev_u32 {v(cm)}, 13, {v(cm)}")
    k(f"v_ldexp_f32 {v(vdt)}, {v(vdt)}, {v(cm)}")
    Z = {}
    e2, th = A(2), A(2)
    for p in (8, 1, 256):
        z = Z[p] = A(4, 4)
        pf = {1: "1.0", 8: "0x41000000", 256: "0x43800000"}[p]
        for n in range(2):
            k(f"v_mul_f32 {v(e2+n)}, {pf}, {v(al+n)}")
            k(f"v_mul_f32 {v(th+n)}, {pf}, {v(be+n)}")
        for n in range(2):
            k(f"v_exp_f32 {v(e2+n)}, {v(e2+n)}")
            k(f"v_fract_f32 {v(th+n)}, {v(th+n)}")
        for n in range(2):
            k(f"v_cos_f32 {v(z+2*n)}, {v(th+n)}")
            k(f"v_sin_f32 {v(z+2*n+1)}, {v(th+n)}")
        k(f"v_pk_mul_f32 {v(z,2)}, {v(z,2)}, {v(e2,2)} op_sel:[0,0] op_sel_hi:[1,0]")
        k(f"v_pk_mul_f32 {v(z+2,2)}, {v(z+2,2)}, {v(e2,2)} op_sel:[0,1] op_sel_hi:[1,1]")
    stamp(k, 28)
    B1 = A(64, 4); yf = A(64, 4)
    def pack(d, src, neg):
        ng = "-" if neg else ""
        k(f"v_cvt_pk_f16_f32 {v(d)}, {v(src)}, {ng}{v(src+1)}")
        k(f"v_cvt_pk_f16_f32 {v(d+1)}, {v(src+2)}, {ng}{v(src+3)}")
    k(f"v_mov_b32 {v(B1)}, 0x3c00")
    k(f"v_mov_b32 {v(B1+1)}, 0x3c00")
    pack(B1 + 2, Z[8], False)
    ya = [A(4, 4), A(4, 4)]
    prev = Z[8]
    for b in range(2, 32):
        cur = ya[b % 2]
        cmul2(k, cur, prev, Z[8])
        pack(B1 + 2 * b, cur, False)
        prev = cur
        if b % 8 == 7:
            for r in range(b - 7, b + 1): k(f"ds_write_b64 {v(vWa)}, {v(B1+2*r,2)} offset:{r*KG_ROW}")
    stamp(k, 29)
    for ks in range(16): k(f"ds_read_b128 {v(yf+4*ks,4)}, {v(vRa)} offset:{32*ks}")
    bar("y")
    def row_of(j, h): return 8 * (j >> 2) + 4 * h + (j & 3)
    rows = {}
    for j in range(8):
        rows[row_of(j, 0)] = j
        rows[row_of(j, 1)] = 256 + (0, 0, 2, 4, 4, 4, 6, 8)[j]
    for j, e in ((8, 0), (9, 4), (10, 8)):
        rows[row_of(j, 0)] = 512 + e; rows[row_of(j, 1)] = 768 + e
    for j, e in ((11, 0), (12, 8)):
        rows[row_of(j, 0)] = 1024 + e; rows[row_of(j, 1)] = 1280 + e
    for j, e in ((13, 0), (14, 8)):
        rows[row_of(j, 0)] = 1536 + e; rows[row_of(j, 1)] = 1792 + e
    rows[row_of(15, 0)] = 8; rows[row_of(15, 1)] = 264
    xp = {}
    nx = [0]
    def keep(src, e):
        xp[e] = B1 + 2 * nx[0]; nx[0] += 1; pack(xp[e], src, True)
    def flush():
        for r, e in sorted(rows.items()):
            if e in xp:
                k(f"ds_write_b64 {v(vWa)}, {v(xp[e],2)} offset:{r*KG_ROW}"); del rows[r]
    Xe = {0: X0}
    keep(X0, 0)
    tmp = ya[0]
    for e in range(1, 8):
        Xe[e] = A(4, 4) if e % 2 == 0 else tmp
        cmul2(k, Xe[e], Xe[e-1], Z[1]); keep(Xe[e], e)
    Xe[8] = A(4, 4); cmul2(k, Xe[8], X0, Z[8]); keep(Xe[8], 8)
    flush()
    bar("x0")
    cur = {e: Xe[e] for e in (0, 2, 4, 6, 8)}
    alt = {0: ya[1], 4: A(4, 4), 8: A(4, 4)}
    for blk in range(1, 8):
        es = (0, 2, 4, 6, 8) if blk == 1 else (0, 4, 8) if blk <= 3 else (0, 8)
        for e in es:
            d = alt[e] if e in alt else tmp
            cmul2(k, d, cur[e], Z[256]); keep(d, 256 * blk + e)
            if e in alt: alt[e], cur[e] = cur[e], d
        if blk in (1, 3, 5, 7): flush(); bar(f"x{blk}")
    assert not rows
    stamp(k, 30)
    xf = B1; acc = ya[0]; A.n = max(A.n, acc + 16)
    for ks in range(15): k(f"ds_read_b128 {v(xf+4*ks,4)}, {v(vRa)} offset:{32*ks}")
    for ks in range(16):
        k(f"s_waitcnt lgkmcnt({14 if ks <= 1 else 15-ks})")
        k(f"v_mfma_f32_32x32x16_f16 {v(acc,16)}, {v(xf+4*ks,4)}, {v(yf+4*ks,4)}, {'0' if ks == 0 else v(acc,16)}")
        if ks == 0: k(f"ds_read_b128 {v(xf+60,4)}, {v(vRa)} offset:{32*15}")
    stamp(k, 31)
    bar("m")
    assert A.n <= KGP, A.n
    o = KGP
    k(f"s_mov_b32 {s(sMk)}, 0xaaaaaaaa")
    k(f"s_mov_b32 {s(sMk+1)}, 0xaaaaaaaa")
    k(f"v_mov_b32 {v(o+32)}, 0")
    for i in range(16): k(f"v_mul_f32 {v(acc+i)}, {v(acc+i)}, {v(vdt)}")
    def cv(d, lo, hi): k(f"v_cvt_pk_bf16_f32 {v(d)}, {v(lo)}, {v(hi)}")
    D = lambda i: acc + i
    for i in range(4): cv(o + i, D(7 - 2 * i), D(6 - 2 * i))
    cv(o+16, D(15), D(7)); cv(o+17, D(6), D(5)); cv(o+18, D(4), D(3)); cv(o+19, D(2), D(1))
    cv(o+4, D(10), D(10)); cv(o+5, D(9), D(9)); cv(o+6, D(9), D(8)); cv(o+7, D(8), D(8))
    cv(o+20, D(10), D(10)); cv(o+21, D(10), D(9)); cv(o+22, D(9), D(9)); cv(o+23, D(8), D(8))
    for gi, c0 in enumerate((acc + 11, acc + 13)):
        d = o + 8 + 4 * gi; e = o + 24 + 4 * gi
        k(f"v_cndmask_b32 {v(t1)}, {v(c0)}, {v(c0+1)}, {s(sMk,2)}")
        cv(d, c0+1, c0+1); cv(d+1, c0+1, t1); cv(d+2, c0, c0); cv(d+3, c0, c0)
        cv(e, c0+1, c0+1); cv(e+1, c0+1, c0+1); cv(e+2, t1, c0); cv(e+3, c0, c0)
    k("s_mov_b64 exec, 1")
    k(f"v_cvt_pk_bf16_f32 {v(o+32)}, {v(acc)}, 0")
    k("s_mov_b64 exec, -1")

def kgen_write(k, bar):
    o = KGP
    k(f"s_mul_i32 {s(sT)}, {s(sWv)}, {CA_CH}")
    k(f"s_add_u32 {s(sT)}, {s(sT)}, {CA_BASE}")
    k(f"s_add_u32 {s(sT2)}, {s(sT)}, 1008")
    k(f"v_sub_u32 {v(t0)}, {s(sT2)}, {v(vL16)}")
    for gi in range(4):
        off = 3072 - 1024 * gi
        r0, r1 = o + 4 * gi, o + 16 + 4 * gi
        k(f"v_add_u32 {v(t1)}, {off + CA_CS + 4}, {v(t0)}")
        k(f"v_add_u32 {v(t2)}, {off + 2*CA_CS + 4}, {v(t0)}")
        k(f"v_add_u32 {v(t3)}, {off + 3*CA_CS + 8}, {v(t0)}")
        k(f"ds_write_b128 {v(t0)}, {v(r1,4)} offset:{off}")
        k(f"ds_write2_b32 {v(t1)}, {v(r0)}, {v(r0+1)} offset0:0 offset1:1")
        k(f"ds_write2_b32 {v(t1)}, {v(r0+2)}, {v(r0+3)} offset0:2 offset1:3")
        k(f"ds_write2_b32 {v(t2)}, {v(r1)}, {v(r1+1)} offset0:0 offset1:1")
        k(f"ds_write2_b32 {v(t2)}, {v(r1+2)}, {v(r1+3)} offset0:2 offset1:3")
        k(f"ds_write2_b64 {v(t3)}, {v(r0,2)}, {v(r0+2,2)} offset0:0 offset1:1")
        bar(f"w{gi}")
    k(f"v_lshl_add_u32 {v(t1)}, {v(vL)}, 2, {s(sT)}")
    k(f"v_mov_b32 {v(t2)}, 0")
    k("s_mov_b64 exec, 0xffff")
    k(f"ds_write_b32 {v(t1)}, {v(o+32)} offset:4096")
    k("s_mov_b64 exec, 0x7fff")
    k(f"ds_write_b32 {v(t1)}, {v(t2)} offset:{CA_CS+4100}")
    k(f"ds_write_b32 {v(t1)}, {v(o+32)} offset:{2*CA_CS+4100}")
    k("s_mov_b64 exec, 0x3fff")
    k(f"ds_write_b32 {v(t1)}, {v(t2)} offset:{3*CA_CS+4104}")
    k("s_mov_b64 exec, -1")


def nonce_ready(k):
    k("s_waitcnt lgkmcnt(0)")
    k(f"s_mul_i32 {s(sNon)}, {s(sNon)}, 0x9e3779b1")
    k(f"s_add_u32 {s(sNon)}, {s(sNon)}, 0x7f4a7c15")

def build():
    k = Asm()
    k("s_cmp_ge_u32 s2, 256")
    k("s_cbranch_scc1 L_end")
    k("s_load_dwordx16 s[36:51], s[0:1], 0")
    k("s_load_dwordx16 s[52:67], s[0:1], 64")
    if STAMP: k(f"v_mov_b32 {v(vST)}, 0")
    k(f"v_lshrrev_b32 {v(t0)}, 6, v0")
    k(f"v_and_b32 {v(vL)}, 63, v0")
    k(f"v_readfirstlane_b32 {s(sWv)}, {v(t0)}")
    k(f"v_and_b32 {v(vC)}, 31, v0")
    k(f"v_bfe_u32 {v(vH)}, v0, 5, 1")
    k(f"v_lshlrev_b32 {v(vL16)}, 4, {v(vL)}")
    k(f"s_and_b32 {s(sRb)}, s2, 7")
    k(f"s_lshl_b32 {s(sRb)}, {s(sRb)}, 2")
    k(f"s_bfe_u32 {s(sT)}, s2, 0x20003")
    k(f"s_add_u32 {s(sRb)}, {s(sRb)}, {s(sT)}")
    k(f"s_lshr_b32 {s(sG)}, s2, 5")
    k(f"s_mov_b32 {s(sMsk16)}, 0xffff0000")
    k(f"s_mov_b32 {s(sHi)}, 0")
    k(f"s_mov_b32 {s(sHi+1)}, -1")
    k(f"s_mov_b32 {s(sKvDone)}, 0")
    k(f"s_lshr_b32 {s(sCh0)}, s2, 1")
    k(f"s_mul_i32 {s(sCh0)}, {s(sCh0)}, 5")
    k(f"s_and_b32 {s(sT)}, s2, 1")
    k(f"s_lshl_b32 {s(sT)}, {s(sT)}, 1")
    k(f"s_add_u32 {s(sCh0)}, {s(sCh0)}, {s(sT)}")
    k("s_waitcnt lgkmcnt(0)")
    stamp(k, 0)
    k(f"s_add_u32 s4, {s(P_WS)}, {hex(WS_W0)}")
    k(f"s_addc_u32 s5, {s(P_WS+1)}, 0")
    k(f"s_load_dword {s(sNon)}, s[4:5], 0")
    srd(k, SWS, P_WS, WS_END); srd(k, SU, P_U, XBYTES)
    NB = 10
    k(f"s_cmp_ge_u32 {s(sWv)}, 4")
    k("s_cbranch_scc1 L_gemm")
    k(f"s_cmp_eq_u32 {s(sWv)}, 3")
    k("s_cbranch_scc1 L_ut")
    k(f"s_add_u32 {s(sD)}, {s(sCh0)}, {s(sWv)}")
    nb = [0]
    plan = dict(y=1, x0=1, x1=1, x3=1, x5=1, x7=1, m=1, w1=1)
    def bar(tag):
        for _ in range(plan.get(tag, 0)):
            k("s_barrier"); nb[0] += 1
    kgen(k, bar)
    nonce_ready(k)
    BS = V_FREE
    k(f"s_lshr_b32 {s(sT)}, {s(sD)}, 6")
    k(f"s_cmp_ge_u32 {s(sT)}, 8")
    k(f"s_cselect_b32 {s(sT2)}, 2, 0")
    k(f"s_sub_u32 {s(sT)}, {s(sT)}, {s(sT2)}")
    k(f"s_lshl_b32 {s(sT)}, {s(sT)}, 12")
    k(f"s_add_u32 {s(sBaseC)}, {s(sT)}, {hex(WS_FUT)}")
    k(f"v_lshlrev_b32 {v(BS)}, 7, {v(vL)}")
    k("s_mov_b32 exec_hi, 0")
    k(f"buffer_load_dword {v(BS+1)}, {v(BS)}, {s(SWS,4)}, {s(sBaseC)} offen {SC}")
    k("s_mov_b32 exec_hi, -1")
    kgen_write(k, bar)
    stamp(k, 2)
    for x in range(8):
        k(f"v_add_u32 {v(t0)}, {64*x}, {v(vL)}")
        k(f"v_mul_u32_u24 {v(t1)}, 13108, {v(t0)}")
        k(f"v_lshrrev_b32 {v(t1)}, 16, {v(t1)}")
        k(f"v_sub_u32 {v(t0)}, {v(t0)}, {v(t1)}")
        k(f"v_lshlrev_b32 {v(t0)}, 4, {v(t0)}")
        k(f"v_subrev_u32 {v(BS+2+x)}, 1984, {v(t0)}")
    assert nb[0] >= 8
    k("s_waitcnt vmcnt(0)")
    k("s_mov_b32 exec_hi, 0")
    k(f"v_cmp_ne_u32 vcc, {s(sNon)}, {v(BS+1)}")
    k("s_mov_b32 exec_hi, -1")
    k(f"s_mov_b32 {s(sKvDone)}, {NB - nb[0]}")
    k("s_cbranch_vccz L_b_go")
    for _ in range(NB - nb[0]): k("s_barrier")
    k(f"s_mov_b32 {s(sKvDone)}, 0")
    k("s_mov_b64 exec, vcc")
    poll(k, "pu", BS + 1, 1, BS, s(sBaseC), sleep=2)
    k.label("L_b_go")
    stamp(k, 6)
    k(f"s_lshl_b32 {s(sT)}, {s(sD)}, 12")
    k(f"s_add_u32 {s(sT)}, {s(sT)}, {hex(WS_UT)}")
    k(f"s_lshl_b32 {s(sM0)}, {s(sWv)}, 13")
    k(f"s_cmp_eq_u32 {s(sWv)}, 2")
    k(f"s_cselect_b32 {s(sM0)}, {CB_ADDR[2]}, {s(sM0)}")
    for x in range(8):
        k(f"s_add_u32 m0, {s(sM0)}, {1024*x}")
        k("s_mov_b64 exec, 0x3ffffff" if x == 7 else "s_nop 0")
        k(f"buffer_load_dwordx4 {v(BS+2+x)}, {s(SWS,4)}, {s(sT)} offen {SC} lds")
    k("s_mov_b64 exec, -1")
    k(f"s_cmp_eq_u32 {s(sKvDone)}, 0")
    k("s_cbranch_scc1 L_b_done")
    for _ in range(NB - nb[0]): k("s_barrier")
    k(f"s_mov_b32 {s(sKvDone)}, 0")
    k.label("L_b_done")
    k("s_waitcnt vmcnt(0)")
    k("s_branch L_join")
    k.label("L_ut")
    k(f"v_lshrrev_b32 {v(t0)}, 3, {v(vL)}")
    k(f"v_mul_u32_u24 {v(t0)}, 1280, {v(t0)}")
    k(f"v_and_b32 {v(t1)}, 7, {v(vL)}")
    k(f"v_lshl_add_u32 {v(t0)}, {v(t1)}, 4, {v(t0)}")
    k(f"s_mul_i32 {s(sBaseA)}, {s(sRb)}, 81920")
    k(f"s_lshl_b32 {s(sT)}, {s(sG)}, 7")
    k(f"s_add_u32 {s(sBaseA)}, {s(sBaseA)}, {s(sT)}")
    def ut_load():
        for p in range(8):
            k(f"s_mov_b32 m0, {UT_BASE + 1024*p}")
            k(f"s_add_u32 {s(sT)}, {s(sBaseA)}, {8*1280*p}")
            k(f"buffer_load_dwordx4 {v(t0)}, {s(SU,4)}, {s(sT)} offen lds")
    ut_load()
    srd(k, SA, P_GATE, 1280)
    k(f"s_mov_b32 m0, {GATE_BASE}")
    k("s_nop 0")
    k(f"buffer_load_dwordx4 {v(vL16)}, {s(SA,4)}, 0 offen lds")
    k(f"buffer_load_dwordx4 {v(vL16)}, {s(SA,4)}, 0 offen offset:1024 lds")
    U32 = V_FREE
    k(f"v_lshrrev_b32 {v(t1)}, 4, {v(vL)}")
    k(f"v_bfe_u32 {v(t2)}, {v(vL)}, 2, 2")
    k(f"v_lshlrev_b32 {v(t2)}, 7, {v(t2)}")
    k(f"v_lshl_add_u32 {v(t2)}, {v(t1)}, 10, {v(t2)}")
    k(f"v_and_b32 {v(t3)}, 3, {v(vL)}")
    k(f"v_lshl_add_u32 {v(t2)}, {v(t3)}, 3, {v(t2)}")
    k(f"v_add_u32 {v(t2)}, {UT_BASE}, {v(t2)}")
    k(f"v_and_b32 {v(t3)}, 15, {v(vL)}")
    k(f"v_lshlrev_b32 {v(t3)}, 12, {v(t3)}")
    k(f"v_lshl_add_u32 {v(t1)}, {v(t1)}, 4, {v(t3)}")
    k(f"s_lshl_b32 {s(sT2)}, {s(sG)}, 18")
    k(f"s_lshl_b32 {s(sT)}, {s(sRb)}, 7")
    k(f"s_add_u32 {s(sT2)}, {s(sT2)}, {s(sT)}")
    k(f"s_add_u32 {s(sT2)}, {s(sT2)}, {hex(WS_UT)}")
    nonce_ready(k)
    def ut_read():
        for cg in range(4):
            for p in range(2):
                for t in range(2):
                    k(f"ds_read_b64_tr_b16 {v(U32+8*cg+4*p+2*t,2)}, {v(t2)} offset:{32*cg + 4096*p + 512*t}")
    def ut_store():
        for cg in range(4):
            for p in range(2):
                k(f"buffer_store_dwordx4 {v(U32+8*cg+4*p,4)}, {v(t1)}, {s(SWS,4)}, {s(sT2)} offen offset:{64*p} {SC}")
            k(f"s_add_u32 {s(sT2)}, {s(sT2)}, {16*4096}")
    k("s_waitcnt vmcnt(0)")
    stamp(k, 1)
    ut_read()
    k("s_waitcnt lgkmcnt(0)")
    k(f"s_cmp_lt_u32 {s(sG)}, 6")
    k("s_cbranch_scc1 L_ut1")
    k(f"s_add_u32 {s(sBaseA)}, {s(sBaseA)}, 256")
    ut_load()
    ut_store()
    k(f"s_add_u32 {s(sT2)}, {s(sT2)}, {64*4096}")
    k("s_barrier")
    k("s_waitcnt vmcnt(8)")
    ut_read()
    k("s_waitcnt lgkmcnt(0)")
    ut_store()
    k("s_branch L_ut2")
    k.label("L_ut1")
    ut_store()
    k("s_barrier")
    k.label("L_ut2")
    stamp(k, 2)
    JUT = int(os.environ.get("JUT", 4))
    for _ in range(JUT - 1): k("s_barrier")
    k("s_waitcnt vmcnt(0)")
    k(f"s_lshl_b32 {s(sT)}, {s(sG)}, 5")
    k(f"s_add_u32 {s(sT)}, {s(sT)}, {s(sRb)}")
    set_flag(k, sT, WS_FUT)
    stamp(k, 6)
    for _ in range(NB - JUT): k("s_barrier")
    k("s_branch L_join")
    k.label("L_gemm")
    k("s_setprio 2")
    G = Alloc(200)
    vD = [G() for _ in range(5)]
    sL = sTau
    k(f"s_sub_u32 {s(sL)}, {s(sWv)}, 4")
    k(f"s_mul_i32 {s(sM0)}, {s(sL)}, 5120")
    k(f"s_add_u32 {s(sChunk)}, {s(sG)}, 1")
    k(f"s_lshr_b32 {s(sT2)}, s2, 3")
    k(f"v_lshlrev_b32 {v(t2)}, 7, {v(vL)}")
    srd(k, SE, P_WQ, 640 * 1280)
    if "nopf" not in EXP:
        k(f"s_mul_i32 {s(sT)}, {s(sT2)}, {200*128}")
        k(f"s_mul_i32 {s(sT3)}, {s(sL)}, {50*128}")
        k(f"s_add_u32 {s(sT)}, {s(sT)}, {s(sT3)}")
        k("s_mov_b32 exec_hi, 0x3ffff")
        k(f"buffer_load_dword {v(t3)}, {v(t2)}, {s(SE,4)}, {s(sT)} offen")
        k(f"s_and_b32 {s(sT)}, s2, 7")
        k(f"s_mul_i32 {s(sT)}, {s(sT)}, {256*1280}")
        k(f"s_mul_i32 {s(sCnt)}, {s(sT2)}, {80*128}")
        k(f"s_add_u32 {s(sT)}, {s(sT)}, {s(sCnt)}")
        k(f"s_mul_i32 {s(sCnt)}, {s(sL)}, {20*128}")
        k(f"s_add_u32 {s(sT)}, {s(sT)}, {s(sCnt)}")
        k("s_mov_b64 exec, 0xfffff")
        k(f"buffer_load_dword {v(t3)}, {v(t2)}, {s(SU,4)}, {s(sT)} offen")
        k("s_mov_b64 exec, -1")
    tx, ty_, tz = V_FREE, V_FREE + 1, V_FREE + 2
    k(f"v_lshrrev_b32 {v(t0)}, 3, {v(vL)}")
    k(f"v_mul_u32_u24 {v(t0)}, 1280, {v(t0)}")
    k(f"v_lshrrev_b32 {v(t1)}, 4, {v(vL)}")
    k(f"v_xor_b32 {v(t1)}, {v(t1)}, {v(vL)}")
    k(f"v_and_b32 {v(t1)}, 7, {v(t1)}")
    k(f"v_lshl_add_u32 {v(tz)}, {v(t1)}, 4, {v(t0)}")
    k(f"s_mul_i32 {s(sCnt)}, {s(sL)}, 5")
    for i in range(5):
        k(f"s_add_u32 {s(sT)}, {s(sCnt)}, {i}")
        k(f"s_cmp_ge_u32 {s(sT)}, 8")
        k(f"s_cbranch_scc1 L_pw{i}")
        k(f"s_and_b32 {s(sT3)}, {s(sT)}, 1")
        k(f"s_lshl_b32 {s(sT3)}, {s(sT3)}, 6")
        k(f"s_mul_i32 {s(sT)}, {s(sT)}, {8*1280}")
        k(f"v_xor_b32 {v(vD[i])}, {s(sT3)}, {v(tz)}")
        k(f"v_add_u32 {v(vD[i])}, {s(sT)}, {v(vD[i])}")
        k(f"s_branch L_pe{i}")
        k.label(f"L_pw{i}")
        k(f"s_lshl_b32 {s(sT)}, {s(sT)}, 6")
        k(f"s_sub_u32 {s(sT)}, {s(sT)}, 512")
        k(f"v_add_u32 {v(t0)}, {s(sT)}, {v(vL)}")
        k(f"v_mul_u32_u24 {v(t1)}, 6554, {v(t0)}")
        k(f"v_lshrrev_b32 {v(t1)}, 16, {v(t1)}")
        k(f"v_mul_u32_u24 {v(tx)}, 10, {v(t1)}")
        k(f"v_sub_u32 {v(t0)}, {v(t0)}, {v(tx)}")
        k(f"v_bfe_u32 {v(tx)}, {v(t1)}, 1, 2")
        k(f"v_and_b32 {v(ty_)}, 1, {v(t1)}")
        k(f"v_lshl_add_u32 {v(tx)}, {v(ty_)}, 2, {v(tx)}")
        k(f"v_and_b32 {v(t1)}, 0xf8, {v(t1)}")
        k(f"v_add_u32 {v(t1)}, {v(t1)}, {v(tx)}")
        k(f"v_mul_u32_u24 {v(t1)}, 1280, {v(t1)}")
        k(f"v_lshl_add_u32 {v(vD[i])}, {v(t0)}, 4, {v(t1)}")
        k.label(f"L_pe{i}")
    k(f"s_mul_i32 {s(sT)}, {s(sRb)}, 81920")
    k(f"s_mul_i32 {s(sT2)}, {s(sG)}, 160")
    for sr, base, stride, lim in ((SA, sBaseA, sStrA, 2), (SB, sBaseB, sStrB, 1), (SCc, sBaseC, sStrC, 1)):
        k(f"s_cmp_lt_u32 {s(sL)}, {lim}")
        for w in range(3): k(f"s_cselect_b32 {s(sr+w)}, {s(SU+w)}, {s(SE+w)}")
        k(f"s_mov_b32 {s(sr+3)}, 0x00020000")
        k(f"s_cselect_b32 {s(base)}, {s(sT)}, {s(sT2)}")
        k(f"s_mov_b32 {s(stride)}, 81920")
        k(f"s_cselect_b32 {s(stride)}, 128, {s(stride)}")
    k(f"s_cmp_lg_u32 {s(sL)}, 3")
    k("s_cbranch_scc1 L_ld_go")
    srd(k, SB, P_WK, 25600)
    k(f"s_and_b32 {s(sT)}, {s(P_WV+1)}, 0xffff")
    k(f"s_cmp_ge_u32 {s(sG)}, 3")
    k(f"s_cselect_b32 {s(SB)}, {s(P_WV)}, {s(SB)}")
    k(f"s_cselect_b32 {s(SB+1)}, {s(sT)}, {s(SB+1)}")
    k(f"s_cselect_b32 {s(sT)}, 3, 0")
    k(f"s_sub_u32 {s(sT)}, {s(sG)}, {s(sT)}")
    k(f"s_lshl_b32 {s(sBaseB)}, {s(sT)}, 4")
    k(f"s_min_u32 {s(sBaseB)}, {s(sBaseB)}, 24")
    k(f"s_mov_b32 {s(sStrB)}, 2560")
    k(f"v_mul_u32_u24 {v(vD[3])}, 40, {v(vL)}")
    k(f"s_cmp_ge_u32 {s(sG)}, 6")
    k(f"s_cselect_b32 {s(SB+2)}, 0, {s(SB+2)}")
    k(f"s_mov_b32 {s(SCc+2)}, 0")
    k.label("L_ld_go")
    vq = VQ()
    def dma(j):
        slot = j % 5
        k(f"s_mul_i32 {s(sT)}, {s(sChunk)}, {s(sStrA)}")
        k(f"s_add_u32 m0, {s(sM0)}, {slot*SLOT}")
        k(f"s_add_u32 {s(sT)}, {s(sT)}, {s(sBaseA)}")
        k(f"buffer_load_dwordx4 {v(vD[0])}, {s(SA,4)}, {s(sT)} offen lds")
        k(f"s_add_u32 m0, {s(sM0)}, {slot*SLOT+1024}")
        k(f"s_mul_i32 {s(sCnt)}, {s(sChunk)}, {s(sStrB)}")
        k(f"buffer_load_dwordx4 {v(vD[1])}, {s(SA,4)}, {s(sT)} offen lds")
        k(f"s_add_u32 m0, {s(sM0)}, {slot*SLOT+2048}")
        k(f"s_add_u32 {s(sCnt)}, {s(sCnt)}, {s(sBaseB)}")
        k(f"buffer_load_dwordx4 {v(vD[2])}, {s(SA,4)}, {s(sT)} offen lds")
        k(f"s_add_u32 m0, {s(sM0)}, {slot*SLOT+3072}")
        k(f"s_mul_i32 {s(sT)}, {s(sChunk)}, {s(sStrC)}")
        k(f"buffer_load_dwordx4 {v(vD[3])}, {s(SB,4)}, {s(sCnt)} offen lds")
        k(f"s_add_u32 m0, {s(sM0)}, {slot*SLOT+4096}")
        k(f"s_add_u32 {s(sT)}, {s(sT)}, {s(sBaseC)}")
        k(f"buffer_load_dwordx4 {v(vD[4])}, {s(SCc,4)}, {s(sT)} offen lds")
        k(f"s_add_u32 {s(sChunk)}, {s(sChunk)}, 1")
        k(f"s_cmp_eq_u32 {s(sChunk)}, 10")
        k(f"s_cselect_b32 {s(sChunk)}, 0, {s(sChunk)}")
        for _ in range(5): vq.push(("c", j))
    dma(0); dma(1)
    vXr = [G() for _ in range(4)]
    vWr = [G() for _ in range(8)]
    vGr = G()
    k(f"v_bfe_u32 {v(t1)}, {v(vL)}, 1, 3")
    k(f"v_xor_b32 {v(t1)}, {v(t1)}, {v(vH)}")
    k(f"v_lshlrev_b32 {v(t1)}, 4, {v(t1)}")
    k(f"v_lshl_add_u32 {v(vXr[0])}, {v(vC)}, 7, {v(t1)}")
    for i in range(1, 4): k(f"v_xor_b32 {v(vXr[i])}, {32*i}, {v(vXr[0])}")
    tb, tsa, tsb = V_FREE, V_FREE + 1, V_FREE + 2
    k(f"v_bfe_u32 {v(t0)}, {v(vL)}, 2, 2")
    k(f"v_lshl_add_u32 {v(tb)}, {v(vH)}, 2, {v(t0)}")
    k(f"v_mul_u32_u24 {v(tb)}, 320, {v(tb)}")
    k(f"s_mul_i32 {s(sT)}, {s(sL)}, 40")
    k(f"s_add_u32 {s(sT)}, {s(sT)}, 8192")
    k(f"v_add_u32 {v(tb)}, {s(sT)}, {v(tb)}")
    k(f"v_and_b32 {v(t1)}, 3, {v(vL)}")
    k(f"v_lshlrev_b32 {v(t1)}, 3, {v(t1)}")
    k(f"v_mov_b32 {v(tsa)}, 2560")
    k(f"v_mov_b32 {v(tsb)}, 160")
    k(f"v_add_u32 {v(tb)}, {v(tb)}, {v(t1)}")
    k(f"s_mov_b32 exec_lo, 0xffff0000")
    k(f"s_mov_b32 exec_hi, 0xffff0000")
    k(f"v_add_u32 {v(tb)}, 32, {v(tb)}")
    k(f"v_lshl_add_u32 {v(t0)}, {v(vH)}, 3, {v(t0)}")
    k(f"v_lshlrev_b32 {v(t0)}, 4, {v(t0)}")
    k(f"s_cmp_eq_u32 {s(sL)}, 0")
    k(f"s_cselect_b32 exec_lo, 0xcccc0000, 0")
    k(f"s_cselect_b32 exec_hi, 0xcccc0000, 0")
    k(f"v_add3_u32 {v(tb)}, {v(t0)}, {v(t1)}, -16")
    k(f"v_add_u32 {v(tb)}, 18432, {v(tb)}")
    k(f"v_mov_b32 {v(tsa)}, 256")
    k(f"v_mov_b32 {v(tsb)}, 64")
    k("s_mov_b64 exec, -1")
    for st in range(4):
        k(f"v_mad_u32_u24 {v(vWr[2*st])}, {v(tsa)}, {st}, {v(tb)}")
        k(f"v_add_u32 {v(vWr[2*st+1])}, {v(vWr[2*st])}, {v(tsb)}")
    k(f"s_cmp_eq_u32 {s(sL)}, 1")
    k(f"s_cselect_b32 {s(sMk)}, 0x00100000, 0")
    k(f"s_mov_b32 {s(sMk+1)}, {s(sMk)}")
    k(f"s_add_u32 {s(sCb)}, {s(sG)}, 1")
    dma(2); dma(3); dma(4)
    nonce_ready(k)
    A = Alloc(V_FREE)
    acc = [A(16, 4), A(16, 4)]
    fa = [[A(4, 4) for _ in range(4)] for _ in range(2)]
    fb = [[[A(4, 4) for _ in range(2)] for _ in range(4)] for _ in range(2)]
    assert A.n <= 200
    cur_base = 0
    for j in range(11):
        if j < 10:
            k(f"s_waitcnt vmcnt({vq.wait(('c', j))}) lgkmcnt(0)")
            k("s_barrier")
            if j == 0: stamp(k, 3)
            if j == 5: stamp(k, 4)
            if "gst" in EXP and j >= 1: stamp(k, 15 + j)
        else:
            k("s_waitcnt lgkmcnt(0)")
        if 1 <= j <= 5: dma(j + 4)
        if j < 10:
            slot = j % 5
            want = (slot // 3) * 3 * SLOT
            if want != cur_base:
                d = want - cur_base
                for r in vXr + vWr:
                    k(f"v_add_u32 {v(r)}, {d}, {v(r)}" if d > 0 else f"v_subrev_u32 {v(r)}, {-d}, {v(r)}")
                cur_base = want
            base = (slot % 3) * SLOT
            k(f"s_lshl_b32 {s(sT)}, {s(sCb)}, 7")
            k(f"s_add_u32 {s(sT)}, {s(sT)}, {GATE_BASE}")
            k(f"v_lshl_add_u32 {v(vGr)}, {v(vH)}, 4, {s(sT)}")
            k(f"s_add_u32 {s(sCb)}, {s(sCb)}, 1")
            k(f"s_cmp_eq_u32 {s(sCb)}, 10")
            k(f"s_cselect_b32 {s(sCb)}, 0, {s(sCb)}")
        for st in range(4):
            for nt in range(2):
                if j >= 1:
                    c = "0" if (j == 1 and st == 0) else v(acc[nt], 16)
                    k(f"v_mfma_f32_32x32x16_bf16 {v(acc[nt],16)}, {v(fa[(j-1)%2][st],4)}, {v(fb[(j-1)%2][st][nt],4)}, {c}")
                if j < 10:
                    k(f"ds_read_b128 {v(fb[j%2][st][nt],4)}, {v(vXr[st])} offset:{base + 4096*nt}")
                    k(f"ds_read_b64_tr_b16 {v(fa[j%2][st]+2*nt,2)}, {v(vWr[2*st+nt])} offset:{base}")
        if j < 10:
            k(f"s_cmp_lg_u32 {s(sL)}, 1")
            k(f"s_cbranch_scc1 L_ng{j}")
            k(f"s_mov_b64 exec, {s(sMk,2)}")
            for st in range(4): k(f"ds_read_b128 {v(fa[j%2][st],4)}, {v(vGr)} offset:{32*st}")
            k("s_mov_b64 exec, -1")
            k.label(f"L_ng{j}")
    stamp(k, 5)
    PKV = 232; vKn = [PKV + 9, PKV + 11]
    sTile, sRec = sBaseA, sBaseB
    k(f"s_cmp_lg_u32 {s(sL)}, 0")
    k("s_cbranch_scc1 L_nokv")
    k(f"s_cmp_ge_u32 {s(sG)}, 6")
    k("s_cbranch_scc1 L_nokv")
    k(f"s_lshl_b32 {s(sTile)}, {s(sRb)}, 1")
    k(f"s_mul_i32 {s(sRec)}, {s(sTile)}, {REC}")
    k(f"s_add_u32 {s(sRec)}, {s(sRec)}, {hex(WS_KV)}")
    k(f"s_mov_b32 {s(sKvDone)}, 2")
    for nt in range(2):
        X = acc[nt] + 12
        k(f"v_cvt_pk_bf16_f32 {v(PKV+2*nt)}, {v(X)}, {v(X+1)}")
        k(f"v_cvt_pk_bf16_f32 {v(PKV+2*nt+1)}, {v(X+2)}, {v(X+3)}")
        k(f"v_mov_b32 {v(vKn[nt])}, 0")
    k(f"s_cmp_ge_u32 {s(sG)}, 3")
    k("s_cbranch_scc1 L_vpub")
    k(f"s_lshl_b32 {s(sT)}, {s(sG)}, 3")
    k(f"v_add_u32 {v(t1)}, {s(sT)}, {v(vL16)}")
    k(f"s_cmp_lg_u32 {s(sG)}, 2")
    k("s_cbranch_scc1 L_kst")
    k(f"v_lshlrev_b32 {v(t1)}, 3, {v(vC)}")
    k(f"v_add_u32 {v(t1)}, 1024, {v(t1)}")
    k(f"s_mov_b64 exec, {s(sHi,2)}")
    k.label("L_kst")
    for nt in range(2):
        X = acc[nt] + 12; pk = PKV + 2 * nt
        k(f"v_lshlrev_b32 {v(X)}, 16, {v(pk)}")
        k(f"v_and_b32 {v(X+1)}, {s(sMsk16)}, {v(pk)}")
        k(f"v_lshlrev_b32 {v(X+2)}, 16, {v(pk+1)}")
        k(f"v_and_b32 {v(X+3)}, {s(sMsk16)}, {v(pk+1)}")
        for i in range(4): k(f"v_mul_f32 {v(X+i)}, {hex(QKSCALE)}, {v(X+i)}")
        k(f"v_cvt_pk_bf16_f32 {v(pk)}, {v(X)}, {v(X+1)}")
        k(f"v_cvt_pk_bf16_f32 {v(pk+1)}, {v(X+2)}, {v(X+3)}")
        k(f"buffer_store_dwordx2 {v(pk,2)}, {v(t1)}, {s(SWS,4)}, {s(sRec)} offen offset:{REC*nt} {SC}")
    for nt in range(2):
        for i in range(4): k(f"v_fmac_f32 {v(vKn[nt])}, {v(acc[nt]+12+i)}, {v(acc[nt]+12+i)}")
    k("s_mov_b64 exec, -1")
    k("s_branch L_nokv")
    k.label("L_vpub")
    k(f"v_lshrrev_b32 {v(t0)}, 4, {v(vC)}")
    k(f"v_bfe_u32 {v(t1)}, {v(vC)}, 2, 1")
    k(f"v_lshl_add_u32 {v(t0)}, {v(t0)}, 1, {v(t1)}")
    k(f"v_mul_u32_u24 {v(t0)}, 320, {v(t0)}")
    k(f"v_and_b32 {v(t1)}, 3, {v(vC)}")
    k(f"v_lshl_add_u32 {v(t0)}, {v(t1)}, 1, {v(t0)}")
    k(f"v_bfe_u32 {v(t1)}, {v(vC)}, 3, 1")
    k(f"v_lshl_add_u32 {v(t0)}, {v(t1)}, 3, {v(t0)}")
    k(f"v_lshl_add_u32 {v(t0)}, {v(vH)}, 6, {v(t0)}")
    k(f"s_sub_u32 {s(sT)}, {s(sG)}, 3")
    k(f"s_lshl_b32 {s(sT)}, {s(sT)}, 7")
    k(f"s_min_u32 {s(sT)}, {s(sT)}, 192")
    k(f"s_add_u32 {s(sRec)}, {s(sRec)}, {s(sT)}")
    k(f"s_cmp_eq_u32 {s(sG)}, 5")
    k(f"s_cselect_b32 exec_lo, 0, -1")
    for nt in range(2):
        pk = PKV + 2 * nt; o_ = 1280 + REC * nt
        k(f"buffer_store_short {v(pk)}, {v(t0)}, {s(SWS,4)}, {s(sRec)} offen offset:{o_} {SC}")
        k(f"buffer_store_short_d16_hi {v(pk)}, {v(t0)}, {s(SWS,4)}, {s(sRec)} offen offset:{o_+16} {SC}")
        k(f"buffer_store_short {v(pk+1)}, {v(t0)}, {s(SWS,4)}, {s(sRec)} offen offset:{o_+32} {SC}")
        k(f"buffer_store_short_d16_hi {v(pk+1)}, {v(t0)}, {s(SWS,4)}, {s(sRec)} offen offset:{o_+48} {SC}")
    k("s_mov_b64 exec, -1")
    k.label("L_nokv")
    QP = fa[0][0]
    k(f"s_mul_i32 {s(sT)}, {s(sL)}, 3072")
    k(f"s_add_u32 {s(sT)}, {s(sT)}, {QI_BASE}")
    k(f"v_add_u32 {v(t0)}, {s(sT)}, {v(vL16)}")
    k(f"v_lshl_add_u32 {v(t1)}, {v(vL)}, 3, {s(sT)}")
    for nt in range(2):
        for i in range(6): k(f"v_cvt_pk_bf16_f32 {v(QP+8*nt+i)}, {v(acc[nt]+2*i)}, {v(acc[nt]+2*i+1)}")
    for nt in range(2):
        k(f"ds_write_b128 {v(t0)}, {v(QP+8*nt,4)} offset:{1536*nt}")
        k(f"ds_write_b64 {v(t1)}, {v(QP+8*nt+4,2)} offset:{1536*nt+1024}")
    k(f"s_cmp_lg_u32 {s(sL)}, 1")
    k("s_cbranch_scc1 L_nogx")
    k(f"v_lshlrev_b32 {v(t0)}, 2, {v(vC)}")
    k(f"s_mov_b64 exec, {s(sHi,2)}")
    for nt in range(2): k(f"ds_write_b32 {v(t0)}, {v(acc[nt]+8)} offset:{GX_BASE+128*nt}")
    k("s_mov_b64 exec, -1")
    k.label("L_nogx")
    k("s_setprio 0")
    k.label("L_join")
    R = Alloc(V_FREE + 16)
    S = [V_FREE, R(16, 4)]
    O = [R(16, 4), R(16, 4)]
    P = R(8, 4)
    Q1 = [R(4, 4), R(4, 4)]; Q2 = [R(2), R(2)]
    K1 = R(32, 4); K2 = R(16, 2); V = R(64, 4)
    vFl = R(2); vM = R(); vOa, vQr, vQ2r = R(), R(), R(); vPa = R(); vWo = R()
    Y = R(16, 4); U = R(8, 4); Dk = R(8, 4)
    vK2a, vVa = R(), R()
    assert R.n <= 252, R.n
    units = [[(0,0),(0,1),(0,2),(1,0),(1,1),(1,2),(2,1),(2,2)],
             [(0,0),(1,0),(1,1),(1,2),(2,0),(2,1),(2,2),(0,3)]]
    tab = [sum((c | t << 2) << (4 * w) for w, (c, t) in enumerate(u)) for u in units]
    k(f"s_bitcmp1_b32 s2, 0")
    k(f"s_cselect_b32 {s(sT)}, {hex(tab[1])}, {hex(tab[0])}" if False else f"s_mov_b32 {s(sT)}, {hex(tab[0])}")
    k(f"s_cselect_b32 {s(sT)}, {hex(tab[1])}, {s(sT)}")
    k(f"s_lshl_b32 {s(sT2)}, {s(sWv)}, 2")
    k(f"s_lshr_b32 {s(sT)}, {s(sT)}, {s(sT2)}")
    k(f"s_and_b32 {s(sCb)}, {s(sT)}, 3")
    k(f"s_bfe_u32 {s(sTy)}, {s(sT)}, 0x20002")
    k(f"s_add_u32 {s(sD)}, {s(sCh0)}, {s(sCb)}")
    C = O[1]
    vAa, vBa = vQr, vQ2r
    k(f"s_mul_i32 {s(sT)}, {s(sCb)}, {CA_CH}")
    k(f"s_cmp_eq_u32 {s(sTy)}, 2")
    k(f"s_cselect_b32 {s(sT2)}, {CA_BASE + 64}, {CA_BASE + 64 + 2048}" if False else f"s_cselect_b32 {s(sT2)}, 0, 2048")
    k(f"s_add_u32 {s(sT)}, {s(sT)}, {s(sT2)}")
    k(f"s_add_u32 {s(sT)}, {s(sT)}, {CA_BASE + 64}")
    k(f"v_and_b32 {v(t1)}, 3, {v(vC)}")
    k(f"v_mul_u32_u24 {v(vAa)}, {CA_CS}, {v(t1)}")
    k(f"v_lshl_add_u32 {v(vAa)}, {v(vH)}, 4, {v(vAa)}")
    k(f"v_lshrrev_b32 {v(t0)}, 2, {v(vC)}")
    k(f"v_lshlrev_b32 {v(t0)}, 3, {v(t0)}")
    k(f"v_sub_u32 {v(vAa)}, {v(vAa)}, {v(t0)}")
    k(f"v_add_u32 {v(vAa)}, {s(sT)}, {v(vAa)}")
    k(f"s_lshl_b32 {s(sT)}, {s(sCb)}, 13")
    k(f"s_cmp_eq_u32 {s(sCb)}, 2")
    k(f"s_cselect_b32 {s(sT)}, {CB_ADDR[2]}, {s(sT)}")
    k(f"s_cmp_eq_u32 {s(sTy)}, 1")
    k(f"s_cselect_b32 {s(sT2)}, 2560, 0")
    k(f"s_add_u32 {s(sT)}, {s(sT)}, {s(sT2)}")
    k(f"v_mul_u32_u24 {v(vBa)}, 80, {v(vC)}")
    k(f"v_lshl_add_u32 {v(vBa)}, {v(vH)}, 4, {v(vBa)}")
    k(f"v_add_u32 {v(vBa)}, {s(sT)}, {v(vBa)}")
    k(f"s_mul_i32 {s(sT)}, {s(sWv)}, 1536")
    k(f"s_add_u32 {s(sT)}, {s(sT)}, {QI_BASE}")
    k(f"v_lshlrev_b32 {v(vK2a)}, 3, {v(vL)}")
    k(f"v_add_u32 {v(t0)}, {s(sT)}, {v(vL16)}")
    k(f"v_add_u32 {v(t1)}, {s(sT)}, {v(vK2a)}")
    k(f"s_and_b32 {s(sT)}, {s(sWv)}, 1")
    k(f"s_lshl_b32 {s(sT)}, {s(sT)}, 7")
    k(f"v_lshl_add_u32 {v(t2)}, {v(vC)}, 2, {s(sT)}")
    k("s_waitcnt lgkmcnt(0)")
    k("s_barrier")
    stamp(k, 7)
    k(f"ds_read_b128 {v(Q1[0],4)}, {v(t0)}")
    k(f"ds_read_b64 {v(Q2[0],2)}, {v(t1)} offset:1024")
    k(f"ds_read_b32 {v(vG)}, {v(t2)} offset:{GX_BASE}")
    FA = [S[1], S[1] + 4, S[0], S[0] + 4]; FB = [S[1] + 8, S[1] + 12, S[0] + 8, S[0] + 12]
    def crd(n, b):
        k(f"ds_read_b64 {v(FA[b],2)}, {v(vAa)} offset:{32*n}")
        k(f"ds_read_b64 {v(FA[b]+2,2)}, {v(vAa)} offset:{32*n+8}")
        k(f"ds_read_b128 {v(FB[b],4)}, {v(vBa)} offset:{(n&1)*32 + (n>>1)*80}")
    for n in range(4): crd(n, n)
    for i in range(16): k(f"v_mov_b32 {v(C+i)}, 0")
    fill = Asm()
    f = fill
    f(f"v_mov_b32 {v(vM)}, 0")
    f(f"v_cvt_pk_bf16_f32 {v(vG)}, {v(vG)}, {v(vG)}")
    f(f"v_and_b32 {v(vG)}, {s(sMsk16)}, {v(vG)}")
    f(f"v_mul_f32 {v(vG)}, {hex(LOG2E ^ 0x80000000)}, {v(vG)}")
    f(f"v_exp_f32 {v(vG)}, {v(vG)}")
    f(f"v_cndmask_b32 {v(Q2[0])}, {v(Q2[0])}, {v(vM)}, {s(sHi,2)}")
    f(f"v_cndmask_b32 {v(Q2[0]+1)}, {v(Q2[0]+1)}, {v(vM)}, {s(sHi,2)}")
    f(f"v_add_f32 {v(vG)}, 1.0, {v(vG)}")
    f(f"v_rcp_f32 {v(vG)}, {v(vG)}")
    for r in list(range(Q1[0], Q1[0] + 4)) + [Q2[0], Q2[0] + 1]:
        f(f"v_dot2_f32_bf16 {v(vM)}, {v(r)}, {v(r)}, {v(vM)}")
    f(f"v_cvt_pk_bf16_f32 {v(vG)}, {v(vG)}, {v(vG)}")
    f(f"v_and_b32 {v(vG)}, {s(sMsk16)}, {v(vG)}")
    f(f"v_sub_f32 {v(vG+1)}, 1.0, {v(vG)}")
    f(f"v_mov_b32 {v(t0)}, {v(vM)}")
    f(f"v_cvt_pk_bf16_f32 {v(vG+1)}, {v(vG+1)}, {v(vG+1)}")
    f(f"v_and_b32 {v(vG+1)}, {s(sMsk16)}, {v(vG+1)}")
    f(f"v_permlane32_swap_b32 {v(vM)}, {v(t0)}")
    f(f"v_add_f32 {v(vM)}, {v(vM)}, {v(t0)}")
    f(f"v_cmp_eq_u32 vcc, 20, {v(vC)}")
    f(f"v_mov_b32 {v(t1)}, {hex(ONES)}")
    f(f"v_mov_b32 {v(vFl+1)}, 0")
    f(f"v_cndmask_b32 {v(t0)}, 0, {v(t1)}, vcc")
    f(f"s_lshl_b32 {s(sT)}, {s(sWv)}, 13")
    f(f"s_add_u32 {s(sT)}, {s(sT)}, {hex(WS_FKV)}")
    f(f"v_lshl_add_u32 {v(vPa)}, {v(vL)}, 7, {s(sT)}")
    f(f"s_mov_b32 {s(sPend)}, 0x3f3f3f3f")
    f(f"s_mov_b32 {s(sPend+1)}, 0x3f3f3f3f")
    f(f"v_mul_u32_u24 {v(vVa)}, 320, {v(vH)}")
    f(f"v_lshl_add_u32 {v(vVa)}, {v(vC)}, 4, {v(vVa)}")
    f(f"s_mul_i32 {s(sBaseC)}, {s(sWv)}, {8*REC}")
    f(f"s_add_u32 {s(sBaseC)}, {s(sBaseC)}, {hex(WS_KV)}")
    f(f"s_bfe_u32 {s(sStrA)}, s2, 0x30003")
    f(f"s_mov_b32 {s(sMk)}, 0x000fffff")
    f(f"s_mov_b32 {s(sMk+1)}, 0x000fffff")
    srd(f, SA, P_WO, 640 * 1280)
    f(f"s_lshr_b32 {s(sT)}, s2, 3")
    f(f"s_lshl_b32 {s(sT)}, {s(sT)}, 3")
    f(f"s_add_u32 {s(sT)}, {s(sT)}, {s(sWv)}")
    f(f"s_mul_i32 {s(sT)}, {s(sT)}, {25*128}")
    f(f"v_min_u32 {v(t2)}, 24, {v(vL)}")
    f(f"v_lshlrev_b32 {v(t2)}, 7, {v(t2)}")
    f(f"buffer_load_dword {v(vWo)}, {v(t2)}, {s(SA,4)}, {s(sT)} offen")
    for i in range(16): f(f"v_mov_b32 {v(K2+i)}, {v(t1)}")
    for i in range(64): f(f"v_mov_b32 {v(V+i)}, {v(t0)}")
    def kv_tile(i):
        k(f"s_mul_i32 {s(sT3)}, {s(sStrA)}, {REC}")
        k(f"s_add_u32 {s(sT3)}, {s(sT3)}, {s(sBaseC)}")
        k(f"buffer_load_dwordx4 {v(K1+4*i,4)}, {v(vL16)}, {s(SWS,4)}, {s(sT3)} offen {SC}")
        k("s_mov_b32 exec_hi, 0")
        k(f"buffer_load_dwordx2 {v(K2+2*i,2)}, {v(vK2a)}, {s(SWS,4)}, {s(sT3)} offen offset:1024 {SC}")
        k(f"s_mov_b64 exec, {s(sMk,2)}")
        k(f"buffer_load_dwordx4 {v(V+8*i,4)}, {v(vVa)}, {s(SWS,4)}, {s(sT3)} offen offset:1280 {SC}")
        k(f"buffer_load_dwordx4 {v(V+8*i+4,4)}, {v(vVa)}, {s(SWS,4)}, {s(sT3)} offen offset:1920 {SC}")
        k("s_mov_b64 exec, -1")
        k(f"s_add_u32 {s(sStrA)}, {s(sStrA)}, 1")
        k(f"s_and_b32 {s(sStrA)}, {s(sStrA)}, 7")
    NPRE = 3
    def kv_flag(tag):
        k(f"s_cmp_lt_u32 {s(sKvDone)}, 2")
        k(f"s_cbranch_scc1 L_nf{tag}")
        for nt in range(2):
            k(f"v_mov_b32 {v(t3)}, {v(vKn[nt])}")
            k(f"v_permlane32_swap_b32 {v(vKn[nt])}, {v(t3)}")
            k(f"v_add_f32 {v(vKn[nt])}, {v(vKn[nt])}, {v(t3)}")
            wave_max(k, vKn[nt], t3)
            k(f"v_mov_b32 {v(vKn[nt]-1)}, {s(sNon)}")
        k(f"s_lshl_b32 {s(sT)}, {s(sTile)}, 3")
        k(f"s_add_u32 {s(sT)}, {s(sT)}, {s(sG)}")
        k(f"s_lshl_b32 {s(sT)}, {s(sT)}, 7")
        k(f"s_add_u32 {s(sT)}, {s(sT)}, {hex(WS_FKV)}")
        k(f"v_mov_b32 {v(t3)}, 0")
        k("s_waitcnt vmcnt(0)")
        k("s_mov_b64 exec, 1")
        for nt in range(2):
            k(f"buffer_store_dwordx2 {v(vKn[nt]-1,2)}, {v(t3)}, {s(SWS,4)}, {s(sT)} offen offset:{1024*nt} {SC}")
        k("s_mov_b64 exec, -1")
        k(f"s_mov_b32 {s(sKvDone)}, 0")
        k.label(f"L_nf{tag}")
    KVF = int(os.environ.get("KVF", 0))
    fi = list(fill.ins); per = (len(fi) + 15) // 16
    if KVF == 0: kv_flag("a")
    for n in range(16):
        k("s_waitcnt lgkmcnt(9)")
        k(f"v_mfma_f32_32x32x16_bf16 {v(C,16)}, {v(FA[n%4],4)}, {v(FB[n%4],4)}, {v(C,16)}")
        crd(n + 4, n % 4)
        k.ins += fi[n*per:(n+1)*per]
        if KVF and n == KVF: kv_flag("a")
    k(f"s_mov_b32 {s(sChunk)}, 1")
    k.label("L_conv")
    k(f"v_add_u32 {v(vAa)}, 512, {v(vAa)}")
    k(f"v_add_u32 {v(vBa)}, 640, {v(vBa)}")
    k(f"s_cmp_lg_u32 {s(sChunk)}, 3")
    k("s_cbranch_scc1 L_cp0")
    k(f"s_mov_b64 exec, {s(sPend,2)}")
    k(f"buffer_load_dwordx2 {v(vFl,2)}, {v(vPa)}, {s(SWS,4)}, 0 offen {SC}")
    k("s_mov_b64 exec, -1")
    k.label("L_cp0")
    for n in range(16):
        k("s_waitcnt lgkmcnt(9)")
        k(f"v_mfma_f32_32x32x16_bf16 {v(C,16)}, {v(FA[n%4],4)}, {v(FB[n%4],4)}, {v(C,16)}")
        crd(n + 4, n % 4)
    stamp_dyn(k, 24, sChunk, 1)
    k(f"s_add_u32 {s(sChunk)}, {s(sChunk)}, 1")
    k(f"s_cmp_lt_u32 {s(sChunk)}, 4")
    k("s_cbranch_scc1 L_conv")
    k(f"s_lshr_b32 {s(sT)}, {s(sWv)}, 1")
    k(f"s_cmp_lg_u32 {s(sTy)}, 2")
    k("s_cbranch_scc1 L_conv_done")
    k(f"s_lshl_b32 {s(sT)}, {s(sT)}, 12")
    k(f"v_add_u32 {v(t0)}, {s(sT)}, {v(vL16)}")
    for q in range(4): k(f"ds_write_b128 {v(t0)}, {v(C+4*q,4)} offset:{XCH_BASE+1024*q}")
    k.label("L_conv_done")
    stamp(k, 8)
    k("s_waitcnt vmcnt(0)")
    k(f"s_mov_b64 exec, {s(sPend,2)}")
    poll(k, "pk", vFl, 2, vPa, "0", first_issued=True, sleep=1)
    for i in range(NPRE): kv_tile(i)
    stamp(k, 9)
    kn = vFl + 1
    k(f"v_add_f32_dpp {v(kn)}, {v(kn)}, {v(kn)} quad_perm:[1,0,3,2] row_mask:0xf bank_mask:0xf")
    k(f"v_add_f32_dpp {v(kn)}, {v(kn)}, {v(kn)} quad_perm:[2,3,0,1] row_mask:0xf bank_mask:0xf")
    wave_max(k, kn, t0)
    k(f"s_lshl_b32 {s(sT)}, {s(sWv)}, 2")
    k(f"v_mov_b32 {v(t0)}, {s(sT)}")
    k(f"ds_write_b32 {v(t0)}, {v(kn)} offset:{KNX_BASE}")
    k(f"v_mov_b32 {v(t0)}, 0")
    k(f"s_add_u32 {s(sT)}, {s(sWv)}, 1")
    k(f"s_lshr_b32 {s(sT)}, {s(sT)}, 1")
    k(f"s_lshl_b32 {s(sT)}, {s(sT)}, 12")
    k(f"v_add_u32 {v(t1)}, {s(sT)}, {v(vL16)}")
    k("s_waitcnt lgkmcnt(0)")
    k("s_barrier")
    stamp(k, 10)
    k(f"ds_read_b128 {v(P,4)}, {v(t0)} offset:{KNX_BASE}")
    k(f"ds_read_b128 {v(P+4,4)}, {v(t0)} offset:{KNX_BASE+16}")
    k(f"s_cmp_lg_u32 {s(sTy)}, 1")
    k("s_cbranch_scc1 L_nox")
    for q in range(4): k(f"ds_read_b128 {v(O[0]+4*q,4)}, {v(t1)} offset:{XCH_BASE+1024*q}")
    k.label("L_nox")
    k(f"s_waitcnt vmcnt({4*NPRE-1})")
    k(f"v_mfma_f32_32x32x16_bf16 {v(S[0],16)}, {v(K1,4)}, {v(Q1[0],4)}, 0")
    k("s_waitcnt lgkmcnt(0)")
    k(f"v_max3_f32 {v(kn)}, {v(P)}, {v(P+1)}, {v(P+2)}")
    k(f"v_max3_f32 {v(kn)}, {v(kn)}, {v(P+3)}, {v(P+4)}")
    k(f"v_max3_f32 {v(kn)}, {v(kn)}, {v(P+5)}, {v(P+6)}")
    k(f"v_max_f32 {v(kn)}, {v(kn)}, {v(P+7)}")
    k(f"v_mul_f32 {v(vM)}, {v(vM)}, {v(kn)}")
    k(f"v_sqrt_f32 {v(vM)}, {v(vM)}")
    k(f"v_mul_f32 {v(vM)}, 0x3f828f5c, {v(vM)}")
    k(f"v_cmp_lt_f32 vcc, 0x42400000, {v(vM)}")
    k("s_cbranch_vccz L_fast")
    k(f"v_mov_b32 {v(vM)}, 0xff800000")
    k(f"s_mov_b32 {s(sT)}, {hex(WS_KV)}")
    k(f"s_mov_b32 {s(sCnt)}, 64")
    k(f"v_lshlrev_b32 {v(t2)}, 3, {v(vC)}")
    k.label("L_fb")
    k(f"buffer_load_dwordx4 {v(P,4)}, {v(vL16)}, {s(SWS,4)}, {s(sT)} offen {SC}")
    k(f"buffer_load_dwordx2 {v(P+4,2)}, {v(t2)}, {s(SWS,4)}, {s(sT)} offen offset:1024 {SC}")
    k("s_waitcnt vmcnt(0)")
    k(f"v_mfma_f32_32x32x16_bf16 {v(S[1],16)}, {v(P,4)}, {v(Q1[0],4)}, 0")
    k(f"v_mfma_f32_32x32x8_bf16 {v(S[1],16)}, {v(P+4,2)}, {v(Q2[0],2)}, {v(S[1],16)}")
    for i in range(8): k(f"v_max3_f32 {v(vM)}, {v(S[1]+2*i)}, {v(S[1]+2*i+1)}, {v(vM)}")
    k(f"s_add_u32 {s(sT)}, {s(sT)}, {REC}")
    k(f"s_sub_u32 {s(sCnt)}, {s(sCnt)}, 1")
    k(f"s_cmp_lg_u32 {s(sCnt)}, 0")
    k("s_cbranch_scc1 L_fb")
    k(f"v_mov_b32 {v(t0)}, {v(vM)}")
    k(f"v_permlane32_swap_b32 {v(vM)}, {v(t0)}")
    k(f"v_max_f32 {v(vM)}, {v(vM)}, {v(t0)}")
    k.label("L_fast")
    k(f"v_and_b32 {v(t0)}, {s(sMsk16)}, {v(vM)}")
    k(f"v_sub_f32 {v(vM)}, {v(vM)}, {v(t0)}")
    k(f"v_and_b32 {v(t1)}, {s(sMsk16)}, {v(vM)}")
    k(f"v_sub_f32 {v(vM)}, {v(vM)}, {v(t1)}")
    k(f"s_mov_b64 exec, {s(sHi,2)}")
    k(f"v_cvt_pk_bf16_f32 {v(Q2[0])}, -{v(t0)}, -{v(t1)}")
    k(f"v_cvt_pk_bf16_f32 {v(Q2[0]+1)}, -{v(vM)}, 0")
    k("s_mov_b64 exec, -1")
    k(f"s_mul_i32 {s(sT)}, {s(sWv)}, 1536")
    k(f"s_add_u32 {s(sT)}, {s(sT)}, {QI_BASE}")
    k(f"s_waitcnt vmcnt({4*NPRE-2})")
    k(f"v_mfma_f32_32x32x8_bf16 {v(S[0],16)}, {v(K2,2)}, {v(Q2[0],2)}, {v(S[0],16)}")
    k(f"v_add_u32 {v(t1)}, {s(sT)}, {v(vK2a)}")
    k(f"ds_write_b64 {v(t1)}, {v(Q2[0],2)} offset:1024")
    k(f"s_cmp_lg_u32 {s(sTy)}, 1")
    k("s_cbranch_scc1 L_y_st")
    for i in range(16): k(f"v_add_f32 {v(C+i)}, {v(C+i)}, {v(O[0]+i)}")
    k.label("L_y_st")
    k(f"v_lshlrev_b32 {v(t2)}, 6, {v(vC)}")
    k(f"v_lshl_add_u32 {v(t2)}, {v(vH)}, 4, {v(t2)}")
    k(f"s_cmp_ge_u32 {s(sTy)}, 2")
    k(f"s_cselect_b32 {s(sT3)}, 0x80000000, 0")
    k(f"v_or_b32 {v(Y+8)}, {s(sT3)}, {v(t2)}")
    k(f"s_lshl_b32 {s(sT)}, {s(sD)}, 12")
    k(f"s_and_b32 {s(sT2)}, {s(sTy)}, 1")
    k(f"s_lshl_b32 {s(sT2)}, {s(sT2)}, 11")
    k(f"s_add_u32 {s(sT)}, {s(sT)}, {s(sT2)}")
    k(f"s_add_u32 {s(sStrC)}, {s(sT)}, {hex(WS_YT)}")
    pack_store16(k, C, Y, None, None, None, store=False)
    for r in list(range(O[0], O[0] + 16)) + list(range(O[1], O[1] + 16)):
        k(f"v_mov_b32 {v(r)}, 0")
    k(f"s_mul_i32 {s(sT)}, {s(sWv)}, 3072")
    k(f"s_add_u32 {s(sT)}, {s(sT)}, {OB_BASE}")
    k(f"v_add_u32 {v(vOa)}, {s(sT)}, {v(vL16)}")
    k(f"s_mov_b32 {s(sTau)}, {s(sWv)}")
    k(f"s_mov_b32 {s(sCb)}, {s(sWv)}")
    k(f"s_mov_b32 {s(sChunk)}, 0")
    sTrip = sChunk
    stamp(k, 11)
    def setup_late():
        srd(k, SB, P_DSKIP, 1280); srd(k, SCc, P_OUT, XBYTES)
        k(f"s_lshr_b32 {s(sTy)}, {s(sWv)}, 1")
        k(f"s_and_b32 {s(sT)}, {s(sWv)}, 1")
        k(f"s_lshl_b32 {s(sT2)}, {s(sRb)}, 1")
        k(f"s_add_u32 {s(sT2)}, {s(sT2)}, {s(sT)}")
        k(f"s_mul_i32 {s(sBaseA)}, {s(sT2)}, {32*1280}")
        k(f"s_mul_i32 {s(sWoS)}, {s(sG)}, 160")
        k(f"s_lshl_b32 {s(sT)}, {s(sTy)}, 6")
        k(f"s_add_u32 {s(sBaseB)}, {s(sWoS)}, {s(sT)}")
        k(f"s_add_u32 {s(sBaseA)}, {s(sBaseA)}, {s(sBaseB)}")
        k(f"s_lshl_b32 {s(sStrB)}, {s(sWoS)}, 11")
        k(f"s_lshl_b32 {s(sT2)}, {s(sRb)}, 7")
        k(f"s_add_u32 {s(sStrB)}, {s(sStrB)}, {s(sT2)}")
        k(f"s_add_u32 {s(sStrB)}, {s(sStrB)}, {hex(WS_YT)}")
        k(f"s_mul_i32 {s(sStrA)}, {s(sRb)}, 81920")
        k(f"s_add_u32 {s(sStrA)}, {s(sStrA)}, {s(sWoS)}")
        k(f"v_mul_u32_u24 {v(t1)}, 6554, {v(vL)}")
        k(f"v_lshrrev_b32 {v(t1)}, 16, {v(t1)}")
        k(f"v_mul_u32_u24 {v(t1)}, {5120-160}, {v(t1)}")
        k(f"v_add_u32 {v(vWo)}, {v(t1)}, {v(vL16)}")
        k(f"s_and_b32 {s(sT)}, {s(sWv)}, 3")
        k(f"s_lshr_b32 {s(sWoN)}, {s(sWv)}, 2")
        k(f"s_mul_i32 {s(sM0)}, {s(sT)}, {WO_PL}")
        k(f"s_mul_i32 {s(sT2)}, {s(sWoN)}, 960")
        k(f"s_add_u32 {s(sM0)}, {s(sM0)}, {s(sT2)}")
        k(f"s_add_u32 {s(sM0)}, {s(sM0)}, {WO_BASE}")
        k(f"s_mul_i32 {s(sT)}, {s(sT)}, 1280")
        k(f"s_add_u32 {s(sWoS)}, {s(sWoS)}, {s(sT)}")
        k(f"s_mul_i32 {s(sT)}, {s(sWoN)}, {24*1280}")
        k(f"s_add_u32 {s(sWoS)}, {s(sWoS)}, {s(sT)}")
    nwo = [0]
    def wo_piece():
        t = nwo[0]; nwo[0] += 1
        k(f"s_cmp_gt_u32 {s(sWoN)}, 26")
        k(f"s_cbranch_scc1 L_wo{t}")
        k(f"s_mov_b32 m0, {s(sM0)}")
        k(f"s_cmp_eq_u32 {s(sWoN)}, 26")
        k(f"s_cselect_b32 exec_hi, 0xff, -1")
        k(f"buffer_load_dwordx4 {v(vWo)}, {s(SA,4)}, {s(sWoS)} offen lds")
        k("s_mov_b32 exec_hi, -1")
        k(f"s_add_u32 {s(sM0)}, {s(sM0)}, 1920")
        k(f"s_add_u32 {s(sWoS)}, {s(sWoS)}, {48*1280}")
        k(f"s_add_u32 {s(sWoN)}, {s(sWoN)}, 2")
        k.label(f"L_wo{t}")
    def hook():
        k(f"s_cmp_lt_u32 {s(sTrip)}, 2")
        k("s_cbranch_scc1 L_hk_end")
        k(f"s_mov_b32 {s(sT3)}, {hex(WS_FY)}")
        k(f"s_cmp_lg_u32 {s(sTrip)}, 2")
        k("s_cbranch_scc1 L_hk3")
        k(f"buffer_load_dwordx4 {v(Y,4)}, {v(vL16)}, {s(SWS,4)}, {s(sT3)} offen {SC}")
        k(f"v_lshlrev_b32 {v(t1)}, 3, {v(vH)}")
        for q in range(4):
            k(f"buffer_load_dwordx2 {v(Dk+2*q,2)}, {v(t1)}, {s(SB,4)}, {s(sBaseB)} offen offset:{16*q}")
        for x in range(2):
            if x:
                k(f"s_cmp_ge_u32 {s(sWv)}, 2")
                k("s_cbranch_scc1 L_hk_end")
            k(f"s_lshl_b32 {s(sT)}, {s(sWv)}, 6")
            k(f"s_add_u32 {s(sT)}, {s(sT)}, {512*x}")
            k(f"v_add_u32 {v(t0)}, {s(sT)}, {v(vL)}")
            k(f"v_mul_u32_u24 {v(t1)}, 6554, {v(t0)}")
            k(f"v_lshrrev_b32 {v(t1)}, 16, {v(t1)}")
            k(f"v_mul_u32_u24 {v(t1)}, {1280-160}, {v(t1)}")
            k(f"s_lshl_b32 {s(sT)}, {s(sT)}, 4")
            k(f"s_add_u32 m0, {s(sT)}, {UL_BASE}")
            k(f"v_lshl_add_u32 {v(t0)}, {v(t0)}, 4, {v(t1)}")
            k(f"buffer_load_dwordx4 {v(t0)}, {s(SU,4)}, {s(sStrA)} offen lds")
        k("s_branch L_hk_end")
        k.label("L_hk3")
        k(f"s_mov_b32 {s(sCnt)}, 20000")
        k.label("L_py")
        for i in range(4): k(f"v_xor_b32 {v(Y+i)}, {s(sNon)}, {v(Y+i)}")
        k(f"v_or3_b32 {v(Y)}, {v(Y)}, {v(Y+1)}, {v(Y+2)}")
        k(f"v_or_b32 {v(Y)}, {v(Y)}, {v(Y+3)}")
        k(f"v_cmp_ne_u32 vcc, 0, {v(Y)}")
        k(f"v_lshrrev_b32 {v(t0)}, 3, {v(vL)}")
        k(f"v_mul_u32_u24 {v(t0)}, {4096-128}, {v(t0)}")
        k(f"v_add_u32 {v(t0)}, {v(t0)}, {v(vL16)}")
        k(f"s_lshl_b32 {s(sT)}, {s(sWv)}, 10")
        k(f"s_lshl_b32 {s(sT2)}, {s(sWv)}, 15")
        k("s_cbranch_vccz L_py_ok")
        k("s_sleep 8")
        k(f"buffer_load_dwordx4 {v(Y,4)}, {v(vL16)}, {s(SWS,4)}, {s(sT3)} offen {SC}")
        k("s_waitcnt vmcnt(0)")
        k(f"s_sub_u32 {s(sCnt)}, {s(sCnt)}, 1")
        k(f"s_cmp_lg_u32 {s(sCnt)}, 0")
        k("s_cbranch_scc1 L_py")
        k("s_endpgm")
        k.label("L_py_ok")
        k(f"s_add_u32 m0, {s(sT)}, {YL_BASE}")
        k(f"s_add_u32 {s(sT2)}, {s(sT2)}, {s(sStrB)}")
        k(f"buffer_load_dwordx4 {v(t0)}, {s(SWS,4)}, {s(sT2)} offen {SC} lds")
        k(f"s_cmp_ge_u32 {s(sWv)}, 2")
        k("s_cbranch_scc1 L_hk_end")
        k(f"s_add_u32 m0, {s(sT)}, {YL_BASE + 8192}")
        k(f"s_add_u32 {s(sT2)}, {s(sT2)}, {64*4096}")
        k(f"buffer_load_dwordx4 {v(t0)}, {s(SWS,4)}, {s(sT2)} offen {SC} lds")
        k(f"s_or_b32 {s(sT)}, s2, {s(sWv)}")
        k(f"s_cmp_lg_u32 {s(sT)}, 0")
        k("s_cbranch_scc1 L_hk_end")
        set_flag(k, sT, WS_W0)
        k.label("L_hk_end")
    PRIO = {4: 3, 6: 2, 0: 1, 2: 0} if "noprio" not in EXP else {}
    def step(st, first):
        q = VQ()
        if first:
            for i in range(NPRE):
                for x in ("k", "k", "v", "v"): q.push((x, i))
        for i in range(8):
            cur, nxt = S[i % 2], S[(i + 1) % 2]
            E = lambda j: k(f"v_exp_f32 {v(cur+j)}, {v(cur+j)}")
            Cv = lambda j: k(f"v_cvt_pk_bf16_f32 {v(P+j)}, {v(cur+2*j)}, {v(cur+2*j+1)}")
            qs = st if i < 7 else 1 - st
            n = (i + 1) % 8
            o5 = O[st] if i > 0 else O[1 - st]
            if i == 0: stamp_dyn(k, (16 if first else 17 if st else 18), sTrip, 2)
            if first and i < 7: k(f"s_waitcnt vmcnt({q.wait(('k', i+1))})")
            if i == 7: k("s_waitcnt vmcnt(2) lgkmcnt(0)" if first else "s_waitcnt vmcnt(0) lgkmcnt(0)" if st == 0 else "s_waitcnt lgkmcnt(0)")
            if i == 4:
                k("s_waitcnt lgkmcnt(0)")
                k("s_barrier")
            k(f"v_mfma_f32_32x32x16_bf16 {v(nxt,16)}, {v(K1+4*n,4)}, {v(Q1[qs],4)}, 0")
            if i in PRIO: k(f"s_setprio {PRIO[i]}")
            if first and i + NPRE < 8:
                kv_tile(i + NPRE)
                for x in ("k", "k", "v", "v"): q.push((x, i + NPRE))
            if first and i == 5:
                k(f"buffer_store_dwordx4 {v(Y,4)}, {v(Y+8)}, {s(SWS,4)}, {s(sStrC)} offen {SC}")
                k(f"buffer_store_dwordx4 {v(Y+4,4)}, {v(Y+8)}, {s(SWS,4)}, {s(sStrC)} offen offset:32 {SC}")
                q.push("y"); q.push("y")
                setup_late()
            if i == 2:
                for x in range(3): k(f"ds_write_b128 {v(vOa)}, {v(O[1-st]+4*x,4)} offset:{1024*x}")
            if i == 3:
                k(f"s_add_u32 {s(sTau)}, {s(sTau)}, 1")
                k(f"s_and_b32 {s(sTau)}, {s(sTau)}, 7")
                k(f"s_mul_i32 {s(sT)}, {s(sTau)}, 1536")
                k(f"s_add_u32 {s(sT)}, {s(sT)}, {QI_BASE}")
                if st == 1:
                    k(f"s_cmp_eq_u32 {s(sTrip)}, 3")
                    k(f"s_cselect_b32 {s(sT2)}, 1, 2")
                    k(f"s_add_u32 {s(sCb)}, {s(sCb)}, {s(sT2)}")
                else:
                    k(f"s_add_u32 {s(sCb)}, {s(sCb)}, 2")
                k(f"s_and_b32 {s(sCb)}, {s(sCb)}, 7")
                k(f"s_mul_i32 {s(sT2)}, {s(sCb)}, 3072")
                k(f"s_add_u32 {s(sT2)}, {s(sT2)}, {OB_BASE}")
                k(f"v_add_u32 {v(vQr)}, {s(sT)}, {v(vL16)}")
                k(f"v_add_u32 {v(vQ2r)}, {s(sT)}, {v(vK2a)}")
                k(f"v_add_u32 {v(vOa)}, {s(sT2)}, {v(vL16)}")
            if i == 4:
                for x in range(3): k(f"ds_read_b128 {v(O[1-st]+4*x,4)}, {v(vOa)} offset:{1024*x}")
                k(f"ds_read_b128 {v(Q1[1-st],4)}, {v(vQr)}")
                k(f"ds_read_b64 {v(Q2[1-st],2)}, {v(vQ2r)} offset:1024")
                if st == 1:
                    k(f"s_lshl_b32 {s(sT)}, {s(sWv)}, 4")
                    k(f"s_or_b32 {s(sT)}, {s(sT)}, {s(sTrip)}")
                    k(f"s_cmp_lg_u32 {s(sT)}, 1")
                    k("s_cbranch_scc1 L_nofy")
                    set_flag(k, 2, WS_FY, 2)
                    k.label("L_nofy")
            if not first and i in (1, 3, 5): wo_piece()
            if st == 1 and i == 0: hook()
            E(0); E(1); E(2); E(3); E(4)
            if not (first and i == 0):
                k(f"v_mfma_f32_32x32x16_bf16 {v(o5,16)}, {v(V+8*((i-1)%8)+4,4)}, {v(P+4,4)}, {v(o5,16)}")
            E(5); E(6); E(7); Cv(0); Cv(1); Cv(2); Cv(3)
            k(f"v_mfma_f32_32x32x8_bf16 {v(nxt,16)}, {v(K2+2*n,2)}, {v(Q2[qs],2)}, {v(nxt,16)}")
            E(8); E(9); E(10); E(11); E(12)
            k(f"v_mfma_f32_32x32x16_bf16 {v(O[st],16)}, {v(V+8*i,4)}, {v(P,4)}, {v(O[st],16)}")
            E(13); E(14); E(15); Cv(4); Cv(5); Cv(6); Cv(7)
    step(0, True)
    k(".p2align 6")
    k.label("L_loop")
    step(1, False)
    k(f"s_cmp_eq_u32 {s(sTrip)}, 3")
    k("s_cbranch_scc1 L_loop_end")
    step(0, False)
    k(f"s_add_u32 {s(sTrip)}, {s(sTrip)}, 1")
    k("s_branch L_loop")
    k.label("L_loop_end")
    k(f"v_mfma_f32_32x32x16_bf16 {v(O[1],16)}, {v(V+8*7+4,4)}, {v(P+4,4)}, {v(O[1],16)}")
    k("s_setprio 0")
    stamp(k, 12)
    k(f"s_add_u32 {s(sTau)}, {s(sWv)}, 7")
    k(f"s_and_b32 {s(sTau)}, {s(sTau)}, 7")
    k(f"s_lshl_b32 {s(sD)}, {s(sRb)}, 3")
    k(f"s_add_u32 {s(sD)}, {s(sD)}, {s(sG)}")
    k(f"s_lshl_b32 {s(sT)}, {s(sD)}, 1")
    k(f"s_and_b32 {s(sT2)}, {s(sTau)}, 1")
    k(f"s_add_u32 {s(sT)}, {s(sT)}, {s(sT2)}")
    k(f"s_mul_i32 {s(sT)}, {s(sT)}, 5120")
    if WS_O: k(f"s_add_u32 {s(sT)}, {s(sT)}, {hex(WS_O)}")
    k(f"s_lshr_b32 {s(sT2)}, {s(sTau)}, 1")
    k(f"s_lshl_b32 {s(sCnt)}, {s(sT2)}, 10")
    k(f"s_add_u32 {s(sCnt)}, {s(sCnt)}, {s(sT)}")
    k(f"s_lshr_b32 {s(sT3)}, {s(sT2)}, 1")
    k(f"s_lshl_b32 {s(sT3)}, {s(sT3)}, 9")
    k(f"s_and_b32 {s(sT2)}, {s(sT2)}, 1")
    k(f"s_lshl_b32 {s(sT2)}, {s(sT2)}, 3")
    k(f"s_add_u32 {s(sT)}, {s(sT)}, {s(sT3)}")
    k(f"s_add_u32 {s(sT)}, {s(sT)}, {s(sT2)}")
    k(f"s_add_u32 {s(sT)}, {s(sT)}, 4096")
    PK = S[1]
    for i in range(12): k(f"v_add_f32 {v(O[1]+i)}, {v(O[1]+i)}, {v(O[0]+i)}")
    k(f"v_mov_b32 {v(t0)}, {v(O[1]+8)}")
    k(f"v_mov_b32 {v(t1)}, {v(O[1]+8)}")
    k(f"v_permlane32_swap_b32 {v(t1)}, {v(t0)}")
    k(f"v_rcp_f32 {v(t0)}, {v(t0)}")
    for i in range(12): k(f"v_mul_f32 {v(O[1]+i)}, {v(O[1]+i)}, {v(t0)}")
    for i in range(6): k(f"v_cvt_pk_bf16_f32 {v(PK+i)}, {v(O[1]+2*i)}, {v(O[1]+2*i+1)}")
    k(f"buffer_store_dwordx4 {v(PK,4)}, {v(vL16)}, {s(SWS,4)}, {s(sCnt)} offen {SC}")
    k("s_mov_b32 exec_hi, 0")
    k(f"buffer_store_dwordx2 {v(PK+4,2)}, {v(vL16)}, {s(SWS,4)}, {s(sT)} offen {SC}")
    k("s_mov_b64 exec, -1")
    WF = O[0]
    assert WF + 160 <= vFl
    acc2 = S[0]; BF = [S[1] + 4 * i for i in range(4)]
    vA1, vA2, vBr, vo, vA1b, vA2b = vOa, vQ2r, vQr, vPa, vFl, vFl + 1
    k(f"s_cmp_eq_u32 {s(sTy)}, 3")
    k("s_cbranch_scc1 L_t_nofrag")
    k(f"v_bfe_u32 {v(t0)}, {v(vL)}, 2, 2")
    k(f"v_mul_u32_u24 {v(t0)}, {WO_PL}, {v(t0)}")
    k(f"v_and_b32 {v(t1)}, 3, {v(vL)}")
    k(f"v_lshl_add_u32 {v(t0)}, {v(t1)}, 3, {v(t0)}")
    k(f"v_bfe_u32 {v(t2)}, {v(vL)}, 4, 1")
    k(f"v_lshl_add_u32 {v(t0)}, {v(t2)}, 5, {v(t0)}")
    k(f"s_lshl_b32 {s(sT)}, {s(sTy)}, 6")
    k(f"s_add_u32 {s(sT)}, {s(sT)}, {WO_BASE}")
    k(f"v_add_u32 {v(t0)}, {s(sT)}, {v(t0)}")
    k(f"v_mul_u32_u24 {v(t1)}, 160, {v(vH)}")
    k(f"v_add_u32 {v(vA1b)}, {v(t0)}, {v(t1)}")
    k(f"v_mul_u32_u24 {v(t1)}, 1600, {v(vH)}")
    k(f"v_add_u32 {v(vA2b)}, {v(t0)}, {v(t1)}")
    k(f"s_mov_b32 {s(sT2)}, {s(sG)}")
    for j in range(8):
        k(f"s_mul_i32 {s(sT)}, {s(sT2)}, 3200")
        k(f"v_add_u32 {v(vA1)}, {s(sT)}, {v(vA1b)}")
        k(f"v_add_u32 {v(vA2)}, {s(sT)}, {v(vA2b)}")
        k(f"s_add_u32 {s(sT2)}, {s(sT2)}, 1")
        k(f"s_and_b32 {s(sT2)}, {s(sT2)}, 7")
        for f in range(5):
            for t in range(2):
                d = WF + 20 * j + 4 * f + 2 * t
                if f < 4: k(f"ds_read_b64_tr_b16 {v(d,2)}, {v(vA1)} offset:{(5*f+2*t)*160}")
                else: k(f"ds_read_b64_tr_b16 {v(d,2)}, {v(vA2)} offset:{(5*t+4)*160}")
        if j == 3:
            k.label("L_t_half")
            k("s_waitcnt vmcnt(0)")
            k("s_barrier")
            k(f"s_cmp_lg_u32 {s(sWv)}, 7")
            k("s_cbranch_scc1 L_t_nf")
            set_flag(k, sD, WS_FO)
            k.label("L_t_nf")
            k(f"s_cmp_eq_u32 {s(sTy)}, 3")
            k("s_cbranch_scc1 L_t_frag_done")
    k("s_branch L_t_frag_done")
    k.label("L_t_nofrag")
    k("s_branch L_t_half")
    k.label("L_t_frag_done")
    stamp(k, 13)
    k(f"s_add_u32 {s(sT)}, {s(sWv)}, {s(sG)}")
    k(f"s_and_b32 {s(sT)}, {s(sT)}, 7")
    k(f"s_lshl_b32 {s(sT2)}, {s(sRb)}, 3")
    k(f"s_add_u32 {s(sD)}, {s(sT)}, {s(sT2)}")
    k(f"s_lshl_b32 {s(sT3)}, {s(sD)}, 7")
    k(f"s_add_u32 {s(sT3)}, {s(sT3)}, {hex(WS_FO)}")
    k(f"v_mov_b32 {v(t3)}, 0")
    k("s_mov_b64 exec, 1")
    k(f"buffer_load_dword {v(t2)}, {v(t3)}, {s(SWS,4)}, {s(sT3)} offen {SC}")
    k("s_mov_b64 exec, -1")
    k(f"s_cmp_eq_u32 {s(sTy)}, 3")
    k("s_cbranch_scc1 L_t_noga")
    YP = S[1] + 8
    k(f"s_and_b32 {s(sT)}, {s(sWv)}, 1")
    k(f"s_mul_i32 {s(sT2)}, {s(sT)}, 5120")
    k(f"s_lshl_b32 {s(sCnt)}, {s(sTy)}, 6")
    k(f"s_add_u32 {s(sT2)}, {s(sT2)}, {s(sCnt)}")
    k(f"v_mul_u32_u24 {v(t0)}, 160, {v(vC)}")
    k(f"v_lshl_add_u32 {v(t0)}, {v(vH)}, 3, {v(t0)}")
    k(f"v_add_u32 {v(t0)}, {s(sT2)}, {v(t0)}")
    k(f"v_bfe_u32 {v(t1)}, {v(vL)}, 2, 2")
    k(f"v_lshl_add_u32 {v(t1)}, {v(vH)}, 2, {v(t1)}")
    k(f"v_lshlrev_b32 {v(t1)}, 7, {v(t1)}")
    k(f"v_and_b32 {v(vo)}, 3, {v(vL)}")
    k(f"v_lshl_add_u32 {v(t1)}, {v(vo)}, 3, {v(t1)}")
    k(f"v_bfe_u32 {v(vo)}, {v(vL)}, 4, 1")
    k(f"v_lshl_add_u32 {v(t1)}, {v(vo)}, 5, {v(t1)}")
    k(f"s_lshl_b32 {s(sT)}, {s(sT)}, 6")
    k(f"s_lshl_b32 {s(sCnt)}, {s(sTy)}, 12")
    k(f"s_add_u32 {s(sT)}, {s(sT)}, {s(sCnt)}")
    k(f"v_add_u32 {v(t1)}, {s(sT)}, {v(t1)}")
    for q in range(4):
        k(f"ds_read_b64 {v(U+2*q,2)}, {v(t0)} offset:{UL_BASE+16*q}")
        k(f"ds_read_b64_tr_b16 {v(YP+2*q,2)}, {v(t1)} offset:{YL_BASE+1024*q}")
    k.label("L_t_noga")
    k(f"v_mul_u32_u24 {v(vo)}, 1280, {v(vC)}")
    k(f"v_lshl_add_u32 {v(vo)}, {v(vH)}, 4, {v(vo)}")
    k(f"s_and_b32 {s(sT)}, {s(sWv)}, 1")
    k(f"s_mul_i32 {s(sT)}, {s(sT)}, 5120")
    k(f"v_add_u32 {v(vBr)}, {s(sT)}, {v(vL16)}")
    k(f"v_add_u32 {v(vA1)}, 40960, {v(vBr)}")
    k("s_waitcnt lgkmcnt(0)")
    k("s_barrier")
    k("s_waitcnt vmcnt(0)")
    k("s_mov_b64 exec, 1")
    poll(k, "po", t2, 1, t3, s(sT3), first_issued=True, sleep=2)
    stamp(k, 14)
    k(f"s_mul_i32 {s(sT)}, {s(sD)}, 10240")
    if WS_O: k(f"s_add_u32 {s(sT)}, {s(sT)}, {hex(WS_O)}")
    k(f"s_mul_i32 {s(sM0)}, {s(sWv)}, 10240")
    order = [(0, 0), (1, 0), (0, 1), (1, 1), (0, 2), (1, 2), (0, 3), (1, 3), (0, 4), (1, 4)]
    for nt, f in order:
        off = nt * 5120 + f * 1024
        k(f"s_add_u32 m0, {s(sM0)}, {off}")
        k(f"s_add_u32 {s(sT2)}, {s(sT)}, {off}")
        k(f"buffer_load_dwordx4 {v(vL16)}, {s(SWS,4)}, {s(sT2)} offen {SC} lds")
    k(f"s_cmp_eq_u32 {s(sTy)}, 3")
    k("s_cbranch_scc1 L_t_noga2")
    for i in range(16):
        if i % 2 == 0:
            k(f"v_lshlrev_b32 {v(t0)}, 16, {v(U+i//2)}")
            k(f"v_lshlrev_b32 {v(t1)}, 16, {v(Dk+i//2)}")
            k(f"v_lshlrev_b32 {v(Y+i)}, 16, {v(YP+i//2)}")
        else:
            k(f"v_and_b32 {v(t0)}, {s(sMsk16)}, {v(U+i//2)}")
            k(f"v_and_b32 {v(t1)}, {s(sMsk16)}, {v(Dk+i//2)}")
            k(f"v_and_b32 {v(Y+i)}, {s(sMsk16)}, {v(YP+i//2)}")
        k(f"v_fmac_f32 {v(Y+i)}, {v(t0)}, {v(t1)}")
        k(f"v_mul_f32 {v(Y+i)}, {v(Y+i)}, {v(vG)}")
    k.label("L_t_noga2")
    first = True
    for part, (fs, wait) in enumerate((((0, 1), 6), ((2, 3, 4), 0))):
        k(f"s_waitcnt vmcnt({wait})")
        k("s_barrier")
        k(f"s_cmp_eq_u32 {s(sTy)}, 3")
        k(f"s_cbranch_scc1 L_t_skip{part}")
        seq = [(j, f) for f in fs for j in range(8)]
        def brd(x):
            j, f = seq[x]
            k(f"ds_read_b128 {v(BF[x%4],4)}, {v(vBr if j < 4 else vA1)} offset:{(j%4)*10240 + f*1024}")
        for x in range(4): brd(x)
        for x in range(len(seq)):
            j, f = seq[x]
            k(f"s_waitcnt lgkmcnt({min(3, len(seq)-1-x)})")
            k(f"v_mfma_f32_32x32x16_bf16 {v(acc2,16)}, {v(WF+20*j+4*f,4)}, {v(BF[x%4],4)}, {'0' if first else v(acc2,16)}")
            first = False
            if x + 4 < len(seq): brd(x + 4)
        k.label(f"L_t_skip{part}")
    k(f"s_cmp_eq_u32 {s(sTy)}, 3")
    k("s_cbranch_scc1 L_fin")
    for i in range(16): k(f"v_fmac_f32 {v(Y+i)}, {v(acc2+i)}, {v(vG+1)}")
    pack_store16(k, Y, U, vo, SCc, s(sBaseA), "", second=False)
    k(f"s_cmp_eq_u32 {s(sTy)}, 2")
    k("s_cbranch_scc1 L_fin")
    k(f"buffer_store_dwordx4 {v(U+4,4)}, {v(vo)}, {s(SCc,4)}, {s(sBaseA)} offen offset:32")
    k.label("L_fin")
    if STAMP:
        k("s_waitcnt vmcnt(0)")
        stamp(k, 15)
        k(f"s_lshl_b32 {s(sT)}, s2, 3")
        k(f"s_add_u32 {s(sT)}, {s(sT)}, {s(sWv)}")
        k(f"s_lshl_b32 {s(sT)}, {s(sT)}, 8")
        k(f"s_add_u32 {s(sT)}, {s(sT)}, {hex(WS_STAMP)}")
        k(f"v_lshlrev_b32 {v(t0)}, 2, {v(vL)}")
        k(f"buffer_store_dword {v(vST)}, {v(t0)}, {s(SWS,4)}, {s(sT)} offen")
    k.label("L_end")
    k("s_endpgm")
    return k

def emit(k, path):
    ref = open(f"cdna_kernels/{NAME}.s.ref").read().split("\n")
    head = [l for l in ref if l.startswith(";") and "@launch" not in l]
    name = NAME + "_kernel"
    out = head + [f"; @launch grid=(256,1,1) block=(512,1,1) lds={LDS_TOTAL}", '.amdgcn_target "amdgcn-amd-amdhsa--gfx950"', ".text"]
    k.fix_hazards(verbose="-v" in sys.argv)
    mv, ms, ma = k.max_regs()
    nv = mv + 1
    print(f"vgpr {nv} sgpr {ms+1} instrs {len(k.ins)}")
    out += [f".globl {name}", ".p2align 8", f".type {name},@function", f"{name}:", k.text()]
    out += ['.section .rodata,"a"', ".p2align 6", f".amdhsa_kernel {name}",
            f"  .amdhsa_next_free_vgpr {nv}", f"  .amdhsa_next_free_sgpr {ms+1}",
            f"  .amdhsa_accum_offset {(nv+3)//4*4}", "  .amdhsa_group_segment_fixed_size 0",
            "  .amdhsa_kernarg_size 128", "  .amdhsa_user_sgpr_count 2",
            "  .amdhsa_user_sgpr_kernarg_segment_ptr 1", "  .amdhsa_system_sgpr_workgroup_id_x 1",
            ".end_amdhsa_kernel"]
    open(path, "w").write("\n".join(out) + "\n")

if __name__ == "__main__":
    args = [a for a in sys.argv[1:] if not a.startswith("-")]
    emit(build(), args[0] if args else f"cdna_kernels/{NAME}.s")
```
